```python
import torch

def _softmax(x, axis=-1):
    return torch.softmax(x, dim=axis)
def _gelu(x):
    return torch.nn.functional.gelu(x, approximate="tanh")
def _silu(x):
    return torch.nn.functional.silu(x)
def _sigmoid(x):
    return torch.sigmoid(x)
def _layernorm(x, axis=-1, eps=1e-5):
    m = x.mean(dim=axis, keepdim=True)
    v = x.var(dim=axis, keepdim=True, unbiased=False)
    return (x - m) / torch.sqrt(v + eps)
def _scatter_add(tgt, idx, src, axis=0):
    return tgt.clone().index_add_(axis, idx, src)
def _segment_sum(src, seg, n):
    out = torch.zeros((n,) + src.shape[1:], dtype=src.dtype)
    return out.index_add_(0, seg, src)
def _pad(x, pw):
    flat = tuple(v for pair in reversed(pw) for v in pair)
    return torch.nn.functional.pad(x, flat)

kernel_name = 'gated_mix__softmax_full_mha__softmax_full_mha__prompt'

def setup_inputs():

    _w = (lambda a: (lambda t: t.to(torch.bfloat16) if t.is_floating_point() else t)(torch.as_tensor(a)))
    def _A_setup():
        B, S, D = 1, 2048, 448
        return {
            "x": _w((lambda *s: torch.randn(*s, dtype=torch.bfloat16) * 0.05)(B, S, D)),
            "wqkv": _w((lambda *s: torch.randn(*s, dtype=torch.bfloat16) * 0.8)(D, 3 * D)),
            "wo": _w((lambda *s: torch.randn(*s, dtype=torch.bfloat16) * 0.05)(D, D)),
        }
    _A_in = _A_setup()

    def _B_setup():
        B, S, D = 1, 2048, 448
        return {
            "x": _w((lambda *s: torch.randn(*s, dtype=torch.bfloat16) * 0.05)(B, S, D)),
            "wqkv": _w((lambda *s: torch.randn(*s, dtype=torch.bfloat16) * 0.8)(D, 3 * D)),
            "wo": _w((lambda *s: torch.randn(*s, dtype=torch.bfloat16) * 0.05)(D, D)),
        }
    _B_in = _B_setup()

    return {
        "A_x": _A_in["x"],
        "A_wqkv": _A_in["wqkv"],
        "A_wo": _A_in["wo"],
        "B_x": _B_in["x"],
        "B_wqkv": _B_in["wqkv"],
        "B_wo": _B_in["wo"],
        "gate_w": _w((lambda *s: torch.randn(*s, dtype=torch.bfloat16) * 0.05)(448) * 16.0),
    }

def reference(A_x, A_wqkv, A_wo, B_x, B_wqkv, B_wo, gate_w):
    def _A_ref(x, wqkv, wo):
        B, S, D = x.shape
        H = 16; Dh = D // H
        qkv = (lambda x, *d: x.permute(*d))((x @ wqkv).reshape(B, S, 3, H, Dh), 2, 0, 3, 1, 4)
        q, k, v = qkv[0], qkv[1], qkv[2]
        scale = Dh ** -0.5
        scores = torch.einsum("bhqd,bhkd->bhqk", q, k) * scale
        p = _softmax(scores, axis=-1)
        o = torch.einsum("bhqk,bhkd->bhqd", p, v)
        return (lambda x, *d: x.permute(*d))(o, 0, 2, 1, 3).reshape(B, S, D) @ wo

    def _B_ref(x, wqkv, wo):
        B, S, D = x.shape
        H = 16; Dh = D // H
        qkv = (lambda x, *d: x.permute(*d))((x @ wqkv).reshape(B, S, 3, H, Dh), 2, 0, 3, 1, 4)
        q, k, v = qkv[0], qkv[1], qkv[2]
        scale = Dh ** -0.5
        scores = torch.einsum("bhqd,bhkd->bhqk", q, k) * scale
        p = _softmax(scores, axis=-1)
        o = torch.einsum("bhqk,bhkd->bhqd", p, v)
        return (lambda x, *d: x.permute(*d))(o, 0, 2, 1, 3).reshape(B, S, D) @ wo

    x = A_x
    g = _sigmoid((x * gate_w).sum(-1, keepdims=True))
    a = _A_ref(x, A_wqkv, A_wo)
    b = _B_ref(x, B_wqkv, B_wo)
    return g * a + (1 - g) * b
```

```python
import struct, sys, math

NAME = "gated_mix__softmax_full_mha__softmax_full_mha__prompt"

def f32hex(x):
    return "0x%08x" % struct.unpack("<I", struct.pack("<f", x))[0]

class Asm:
    def __init__(self):
        self.lines = []
    def __call__(self, s):
        for ln in s.strip("\n").split("\n"):
            self.lines.append("    " + ln.strip())
    def label(self, l):
        self.lines.append(l + ":")
    def raw(self, s):
        self.lines.append(s)
    def text(self):
        return "\n".join(self.lines) + "\n"

class Cnt:
    def __init__(self):
        self.q = []
    def issue(self, tag, n=1):
        for _ in range(n):
            self.q.append(tag)
    def need(self, *tags):
        idx = -1
        for i, t in enumerate(self.q):
            if t in tags:
                idx = i
        if idx < 0:
            return None
        n = len(self.q) - 1 - idx
        self.q = self.q[idx + 1:]
        return n

def vr(lo, n):
    return f"v[{lo}:{lo+n-1}]"
def ar(lo, n):
    return f"a[{lo}:{lo+n-1}]"

QF_BASE = 0
KV_BASE = 4 << 20
OF_BASE = 12 << 20
WOF_BASE = 16 << 20
G_BASE = 17 << 20
WS_SIZE = 18 << 20
X_BYTES = 2048 * 448 * 2
W_BYTES = 448 * 1344 * 2
WO_BYTES = 448 * 448 * 2
OUT_BYTES = 2048 * 448 * 2
OOB = 0x40000000

QSCALE = math.log2(math.e) / math.sqrt(28.0)

def kd(name, vgpr, sgpr, accum):
    return f"""
.section .rodata,"a"
.p2align 6
.amdhsa_kernel {name}
  .amdhsa_next_free_vgpr {vgpr}
  .amdhsa_next_free_sgpr {sgpr}
  .amdhsa_accum_offset {accum}
  .amdhsa_group_segment_fixed_size 0
  .amdhsa_kernarg_size 80
  .amdhsa_user_sgpr_count 2
  .amdhsa_user_sgpr_kernarg_segment_ptr 1
  .amdhsa_system_sgpr_workgroup_id_x 1
.end_amdhsa_kernel
"""

def head(a, name):
    a.raw(".text")
    a.raw(f".globl {name}")
    a.raw(".p2align 8")
    a.raw(f".type {name},@function")
    a.label(name)

def srd(a, d, lo, hi, nbytes):
    a(f"s_mov_b32 s{d}, s{lo}")
    a(f"s_mov_b32 s{d+1}, s{hi}")
    a(f"s_mov_b32 s{d+2}, {nbytes}")
    a(f"s_mov_b32 s{d+3}, 0x00020000")

def decode_hh_qb(a, s_hh, s_qb, t):
    a(f"s_and_b32 s{t}, s2, 7")
    a(f"s_lshl_b32 s{s_hh}, s{t}, 2")
    a(f"s_lshr_b32 s{t}, s2, 3")
    a(f"s_lshr_b32 s{s_qb}, s{t}, 2")
    a(f"s_and_b32 s{t}, s{t}, 3")
    a(f"s_add_u32 s{s_hh}, s{s_hh}, s{t}")

K1_WIMG = 0
K1_XBASE = 448 * 192
K1_GBASE = K1_XBASE + 8 * 8192
K1_LDS = K1_GBASE + 1024

def gen_k1():
    a = Asm()
    name = "qkv_kernel"
    head(a, name)
    S_HH, S_QB, S_W, S_H, S_T, S_TT = 40, 41, 42, 43, 44, 45
    a("s_cmp_ge_u32 s2, 256")
    a("s_cbranch_scc1 K1_END")
    a("s_load_dwordx4 s[24:27], s[0:1], 0")
    a("s_load_dwordx2 s[28:29], s[0:1], 16")
    a("s_load_dwordx4 s[32:35], s[0:1], 32")
    a("s_load_dwordx2 s[36:37], s[0:1], 48")
    a("s_load_dwordx2 s[38:39], s[0:1], 72")
    decode_hh_qb(a, S_HH, S_QB, S_T)
    a("v_lshrrev_b32 v1, 6, v0")
    a("v_and_b32 v2, 63, v0")
    a(f"v_readfirstlane_b32 s{S_W}, v1")
    a(f"s_and_b32 s{S_H}, s{S_HH}, 15")
    a(f"s_lshl_b32 s{S_TT}, s{S_QB}, 3")
    a("s_nop 3")
    a(f"s_add_u32 s{S_TT}, s{S_TT}, s{S_W}")
    V_XD = 130
    V_XR = 134
    V_WD = 138
    V_WR = 139
    V_GR = 141
    V_L16 = 142
    V_PO = 143
    V_PD = 146
    V_GA = 128
    a(f"v_lshlrev_b32 v{V_L16}, 4, v2")
    a("v_lshrrev_b32 v3, 3, v2")
    a("v_and_b32 v4, 7, v2")
    a(f"s_lshl_b32 s{S_T}, s{S_TT}, 5")
    for i in range(4):
        a(f"v_add_u32 v5, {8*i}, v3")
        a("v_lshrrev_b32 v6, 1, v5")
        a("v_and_b32 v6, 7, v6")
        a("v_xor_b32 v6, v6, v4")
        a(f"v_add_u32 v5, s{S_T}, v5")
        a("v_mul_u32_u24 v5, 896, v5")
        a(f"v_lshl_add_u32 v{V_XD+i}, v6, 4, v5")
    a("v_and_b32 v3, 31, v2")
    a("v_lshrrev_b32 v4, 5, v2")
    a("v_lshrrev_b32 v5, 1, v3")
    a("v_and_b32 v5, 7, v5")
    a(f"s_lshl_b32 s{S_T}, s{S_W}, 13")
    a(f"s_add_u32 s46, s{S_T}, {K1_XBASE}")
    a("v_lshlrev_b32 v6, 7, v3")
    a("v_add_u32 v6, s46, v6")
    for j in range(4):
        a(f"v_add_u32 v7, {2*j}, v4")
        a("v_xor_b32 v7, v7, v5")
        a(f"v_lshl_add_u32 v{V_XR+j}, v7, 4, v6")
    a("v_lshlrev_b32 v7, 4, v4")
    a(f"v_add_u32 v{V_GR}, {K1_GBASE}, v7")
    a("v_bfe_u32 v5, v2, 2, 2")
    a("v_lshl_add_u32 v5, v4, 3, v5")
    a("v_mul_u32_u24 v5, 192, v5")
    a("v_bfe_u32 v6, v2, 4, 1")
    a("v_lshl_add_u32 v5, v6, 5, v5")
    a("v_and_b32 v6, 3, v2")
    a(f"v_lshl_add_u32 v{V_WR}, v6, 3, v5")
    a(f"v_add_u32 v{V_WR+1}, {14*3072}, v{V_WR}")
    a("v_mul_u32_u24 v5, 43, v2")
    a("v_lshrrev_b32 v5, 9, v5")
    a("v_mul_u32_u24 v6, 12, v5")
    a("v_sub_u32 v6, v2, v6")
    a("v_mul_u32_u24 v5, 2688, v5")
    a("v_lshrrev_b32 v7, 2, v6")
    a("v_mul_u32_u24 v7, 896, v7")
    a("v_add_u32 v5, v5, v7")
    a("v_and_b32 v6, 3, v6")
    a("v_lshl_add_u32 v5, v6, 4, v5")
    a(f"s_mul_i32 s{S_T}, s{S_H}, 56")
    a(f"v_add_u32 v{V_WD}, s{S_T}, v5")
    a(f"s_lshr_b32 s47, s{S_TT}, 1")
    a(f"s_and_b32 s48, s{S_TT}, 1")
    a(f"s_mul_i32 s{S_T}, s{S_H}, 28")
    a("s_lshl_b32 s49, s48, 4")
    a(f"s_add_u32 s{S_T}, s{S_T}, s49")
    a("v_lshlrev_b32 v5, 2, v4")
    a(f"v_add_u32 v5, s{S_T}, v5")
    a("v_mul_u32_u24 v5, 896, v5")
    a("s_lshl_b32 s49, s47, 6")
    a("v_lshl_add_u32 v5, v3, 1, v5")
    a(f"v_add_u32 v{V_PO}, s49, v5")
    a(f"v_add_u32 v{V_PO+1}, {8*896}, v{V_PO}")
    a("v_mul_u32_u24 v5, s48, v4")
    a("v_lshlrev_b32 v5, 30, v5")
    a(f"v_add_u32 v{V_PO+1}, v5, v{V_PO+1}")
    ACC = {"q": 16, "k": 32, "v": 48}
    for r in range(16, 64):
        a(f"v_mov_b32 v{r}, 0")
    a(f"v_mov_b32 v{V_GA}, 0")
    a("s_waitcnt lgkmcnt(0)")
    srd(a, 4, 24, 25, X_BYTES)
    a(f"s_cmp_ge_u32 s{S_HH}, 16")
    a("s_cselect_b32 s8, s32, s26")
    a("s_cselect_b32 s9, s33, s27")
    a(f"s_mov_b32 s10, {W_BYTES}")
    a("s_mov_b32 s11, 0x00020000")
    a("s_cselect_b32 s16, s34, s28")
    a("s_cselect_b32 s17, s35, s29")
    a(f"s_mov_b32 s18, {WO_BYTES}")
    a("s_mov_b32 s19, 0x00020000")
    srd(a, 12, 38, 39, WS_SIZE)
    srd(a, 20, 36, 37, 896)

    vm = Cnt()
    lg = Cnt()
    def wait_vm(*tags):
        n = vm.need(*tags)
        if n is not None:
            a(f"s_waitcnt vmcnt({n})")
    def wait_lg(*tags):
        n = lg.need(*tags)
        if n is not None:
            a(f"s_waitcnt lgkmcnt({min(n,15)})")

    def dma_x(s):
        slot = s & 1
        a(f"s_mov_b32 s50, {s*128}")
        for i in range(4):
            a(f"s_add_u32 m0, s46, {slot*4096 + i*1024}")
            a("s_nop 0")
            a(f"buffer_load_dwordx4 v{V_XD+i}, s[4:7], s50 offen lds")
            vm.issue(f"X{s}")
    def dma_w(n):
        a(f"s_add_u32 s51, s{S_W}, {8*n}")
        a("s_mul_i32 s52, s51, 10752")
        a("s_mul_i32 s51, s51, 768")
        a("s_mov_b32 m0, s51")
        a("s_nop 0")
        a(f"buffer_load_dwordx4 v{V_WD}, s[8:11], s52 offen lds")
        vm.issue(f"W{n}")
    XF = 64
    WF = 96
    GF = 120
    def read_x(s):
        for j in range(4):
            a(f"ds_read_b128 {vr(XF + (s&1)*16 + 4*j, 4)}, v{V_XR+j} offset:{(s&1)*4096}")
            lg.issue(f"XR{s}")
    def read_w(ks):
        base = V_WR if ks < 14 else V_WR + 1
        off = (ks % 14) * 3072
        st = ks & 1
        for seg in range(3):
            d = WF + st * 12 + seg * 4
            a(f"ds_read_b64_tr_b16 {vr(d,2)}, v{base} offset:{off + seg*64}")
            a(f"ds_read_b64_tr_b16 {vr(d+2,2)}, v{base} offset:{off + seg*64 + 768}")
            lg.issue(f"WR{ks}", 2)
        a(f"ds_read_b128 {vr(GF + st*4, 4)}, v{V_GR} offset:{ks*32}")
        lg.issue(f"WR{ks}")

    dma_x(0)
    a("s_mov_b32 exec_hi, 0xffff")
    for n in range(4):
        dma_w(n)
    a("s_mov_b32 exec_hi, -1")
    a(f"s_mov_b32 m0, {K1_GBASE}")
    a("s_nop 0")
    a(f"buffer_load_dwordx4 v{V_L16}, s[20:23], 0 offen lds")
    vm.issue("G")
    dma_x(1)
    a("s_mov_b32 exec_hi, 0xffff")
    for n in range(4, 14):
        dma_w(n)
    a("s_mov_b32 exec_hi, -1")
    for jj in range(8):
        a(f"buffer_load_ushort v{V_PD+jj}, v{V_PO + (jj>>2)}, s[16:19], 0 offen offset:{(jj&3)*896}")
        vm.issue("P")
    wait_vm("G")
    a("s_barrier")
    read_x(0)
    read_w(0)
    wait_lg("XR0")
    dma_x(2)

    for ks in range(28):
        s, j = divmod(ks, 4)
        if ks == 8:
            pass
        if ks + 1 < 28:
            if ks + 1 == 8:
                wait_vm("W13")
                a("s_barrier")
            read_w(ks + 1)
        if j == 1 and s + 1 < 7:
            wait_vm(f"X{s+1}")
            read_x(s + 1)
        wait_lg(f"WR{ks}", f"XR{s}")
        st = ks & 1
        x = vr(XF + (s & 1) * 16 + 4 * j, 4)
        w = lambda seg: vr(WF + st * 12 + seg * 4, 4)
        a(f"v_mfma_f32_32x32x16_bf16 {vr(16,16)}, {w(0)}, {x}, {vr(16,16)}")
        a(f"v_mfma_f32_32x32x16_bf16 {vr(32,16)}, {w(1)}, {x}, {vr(32,16)}")
        a(f"v_mfma_f32_32x32x16_bf16 {vr(48,16)}, {x}, {w(2)}, {vr(48,16)}")
        for d in range(4):
            a(f"v_dot2c_f32_bf16 v{V_GA}, v{XF + (s&1)*16 + 4*j + d}, v{GF + st*4 + d}")
        if j == 2 and s + 3 < 7:
            wait_lg(f"XR{s+1}")
            dma_x(s + 3)
        if ks == 12:
            wait_vm("P")
            for m in range(4):
                a(f"v_lshl_or_b32 v{V_PD+m}, v{V_PD+2*m+1}, 16, v{V_PD+2*m}")
            a("s_lshl_b32 s53, s47, 5")
            a(f"s_add_u32 s53, s53, s{S_HH}")
            a("s_lshl_b32 s53, s53, 1")
            a("s_add_u32 s53, s53, s48")
            a("s_lshl_b32 s53, s53, 10")
            a(f"s_add_u32 s53, s53, {WOF_BASE}")
            a(f"s_cmp_ge_u32 s{S_TT}, 28")
            a(f"s_cselect_b32 s53, {OOB}, s53")
            a(f"buffer_store_dwordx4 {vr(V_PD,4)}, v{V_L16}, s[12:15], s53 offen")
            vm.issue("PS")

    a("s_nop 7")
    a("s_nop 7")
    a(f"s_mov_b32 s54, {f32hex(QSCALE)}")
    for r in range(16):
        a(f"v_mul_f32 v{16+r}, s54, v{16+r}")
    PK = 64
    for t, base in enumerate((16, 32, 48)):
        for m in range(8):
            a(f"v_cvt_pk_bf16_f32 v{PK + 8*t + m}, v{base+2*m}, v{base+2*m+1}")
    a("s_mov_b32 exec_lo, 0")
    a(f"v_mov_b32 v{PK+6}, 0")
    a(f"v_mov_b32 v{PK+7}, 0")
    a(f"v_mov_b32 v{PK+8+6}, 0x3f803f80")
    a(f"v_mov_b32 v{PK+8+7}, 0x00003f80")
    a("s_mov_b32 exec_lo, 0x10000000")
    a("s_mov_b32 exec_hi, 0x10000000")
    for m in range(8):
        a(f"v_mov_b32 v{PK+16+m}, 0x3f803f80")
    a("s_mov_b64 exec, -1")
    a(f"s_lshl_b32 s53, s{S_HH}, 6")
    a(f"s_add_u32 s53, s53, s{S_TT}")
    a("s_lshl_b32 s55, s53, 11")
    a("s_lshl_b32 s56, s53, 12")
    a(f"s_add_u32 s56, s56, {KV_BASE}")
    a(f"buffer_store_dwordx4 {vr(PK,4)}, v{V_L16}, s[12:15], s55 offen")
    a(f"buffer_store_dwordx4 {vr(PK+4,4)}, v{V_L16}, s[12:15], s55 offen offset:1024")
    for m in range(4):
        a(f"buffer_store_dwordx4 {vr(PK+8+4*m,4)}, v{V_L16}, s[12:15], s56 offen offset:{1024*m}")
    a(f"v_mov_b32 v5, v{V_GA}")
    a(f"v_mov_b32 v6, v{V_GA}")
    a("s_nop 1")
    a("v_permlane32_swap_b32 v5, v6")
    a("s_nop 1")
    a("v_add_f32 v5, v5, v6")
    a(f"v_mul_f32 v5, {f32hex(-math.log2(math.e))}, v5")
    a("v_exp_f32 v5, v5")
    a("s_nop 0")
    a("v_add_f32 v5, 1.0, v5")
    a("v_rcp_f32 v5, v5")
    a("v_and_b32 v6, 31, v2")
    a("v_lshlrev_b32 v6, 2, v6")
    a(f"s_lshl_b32 s53, s{S_TT}, 7")
    a(f"s_add_u32 s53, s53, {G_BASE}")
    a(f"s_cmp_lg_u32 s{S_HH}, 0")
    a(f"s_cselect_b32 s53, {OOB}, s53")
    a("buffer_store_dword v5, v6, s[12:15], s53 offen")
    a.label("K1_END")
    a("s_endpgm")
    return a.text() + kd(name, 160, 64, 160)

K2_STAGE = 32768
K2_LDS = 3 * K2_STAGE

def gen_k2():
    a = Asm()
    name = "attn_kernel"
    head(a, name)
    S_HH, S_QB, S_W, S_T, S_TT = 40, 41, 42, 44, 45
    S_ST, S_CUR, S_NXT, S_PRV, S_SOFF, S_W4K = 46, 47, 48, 49, 50, 51
    Q, SA, SB, O, P = 8, 16, 32, 48, 64
    KB = [72, 80]
    VB = [88, 96]
    V_L16, V_DM, V_CUR, V_NXT, V_G = 104, 105, 106, 107, 108
    S = [SA, SB]
    a("s_cmp_ge_u32 s2, 256")
    a("s_cbranch_scc1 K2_END")
    a("s_load_dwordx2 s[38:39], s[0:1], 72")
    decode_hh_qb(a, S_HH, S_QB, S_T)
    a("v_lshrrev_b32 v1, 6, v0")
    a("v_and_b32 v2, 63, v0")
    a(f"v_readfirstlane_b32 s{S_W}, v1")
    a(f"v_lshlrev_b32 v{V_L16}, 4, v2")
    a(f"v_lshlrev_b32 v{V_DM}, 12, v1")
    a(f"v_add_u32 v{V_DM}, v{V_DM}, v{V_L16}")
    a(f"s_lshl_b32 s{S_TT}, s{S_QB}, 3")
    a("s_nop 3")
    a(f"s_add_u32 s{S_TT}, s{S_TT}, s{S_W}")
    a(f"s_lshl_b32 s{S_W4K}, s{S_W}, 12")
    a("v_and_b32 v3, 31, v2")
    a("v_lshlrev_b32 v3, 2, v3")
    a("s_waitcnt lgkmcnt(0)")
    srd(a, 12, 38, 39, WS_SIZE)
    a(f"s_lshl_b32 s{S_T}, s{S_HH}, 18")
    a(f"s_add_u32 s{S_T}, s{S_T}, {KV_BASE}")
    a(f"s_add_u32 s4, s38, s{S_T}")
    a("s_addc_u32 s5, s39, 0")
    a("s_mov_b32 s6, 262144")
    a("s_mov_b32 s7, 0x00020000")
    a.label("K2_RESTART")
    for st in range(2):
        a(f"s_add_u32 m0, s{S_W4K}, {st*K2_STAGE}")
        a(f"s_mov_b32 s{S_SOFF}, {st*K2_STAGE}")
        for i in range(4):
            a(f"buffer_load_dwordx4 v{V_DM}, s[4:7], s{S_SOFF} offen offset:{i*1024} lds")
        if st == 0:
            a(f"s_lshl_b32 s53, s{S_HH}, 6")
            a(f"s_add_u32 s53, s53, s{S_TT}")
            a("s_lshl_b32 s53, s53, 11")
            a(f"buffer_load_dwordx4 {vr(Q,4)}, v{V_L16}, s[12:15], s53 offen")
            a(f"buffer_load_dwordx4 {vr(Q+4,4)}, v{V_L16}, s[12:15], s53 offen offset:1024")
            a(f"s_lshl_b32 s53, s{S_TT}, 7")
            a(f"s_add_u32 s53, s53, {G_BASE}")
            a(f"buffer_load_dword v{V_G}, v3, s[12:15], s53 offen")
    a(f"s_mov_b32 s{S_ST}, 0")
    a(f"s_mov_b32 s{S_CUR}, 0")
    a(f"s_mov_b32 s{S_NXT}, {K2_STAGE}")
    a(f"s_mov_b32 s{S_PRV}, {2*K2_STAGE}")
    a(f"v_mov_b32 v{V_CUR}, v{V_L16}")
    a(f"v_add_u32 v{V_NXT}, {K2_STAGE}, v{V_L16}")
    for r in range(16):
        a(f"v_mov_b32 v{O+r}, 0")
    for r in range(8):
        a(f"v_mov_b32 v{P+r}, 0")
        a(f"v_mov_b32 v{VB[1]+r}, 0")
    a("s_waitcnt vmcnt(4)")
    a("s_barrier")
    a(f"ds_read_b128 {vr(KB[0],4)}, v{V_CUR}")
    a(f"ds_read_b128 {vr(KB[0]+4,4)}, v{V_CUR} offset:1024")
    a(f"ds_read_b128 {vr(KB[1],4)}, v{V_CUR} offset:4096")
    a(f"ds_read_b128 {vr(KB[1]+4,4)}, v{V_CUR} offset:5120")
    a(f"ds_read_b128 {vr(VB[0],4)}, v{V_CUR} offset:2048")
    a(f"ds_read_b128 {vr(VB[0]+4,4)}, v{V_CUR} offset:3072")
    a("s_waitcnt lgkmcnt(0)")
    a(f"v_mfma_f32_32x32x16_bf16 {vr(SA,16)}, {vr(KB[0],4)}, {vr(Q,4)}, 0")
    a(f"v_mfma_f32_32x32x16_bf16 {vr(SA,16)}, {vr(KB[0]+4,4)}, {vr(Q+4,4)}, {vr(SA,16)}")
    a("s_nop 15")
    a(f"v_max3_f32 v4, v{SA}, v{SA+1}, v{SA+2}")
    for r in range(3, 15, 2):
        a(f"v_max3_f32 v4, v4, v{SA+r}, v{SA+r+1}")
    a(f"v_max_f32 v4, v4, v{SA+15}")
    a("v_mov_b32 v5, v4")
    a("s_nop 1")
    a("v_permlane32_swap_b32 v4, v5")
    a("s_nop 1")
    a("v_max_f32 v4, v4, v5")
    a.label("K2_SETM")
    a("v_sub_f32 v4, 0, v4")
    a("v_and_b32 v5, 0xffff0000, v4")
    a("v_sub_f32 v4, v4, v5")
    a("v_and_b32 v6, 0xffff0000, v4")
    a("v_sub_f32 v4, v4, v6")
    a("v_lshrrev_b32 v5, 16, v5")
    a("s_mov_b32 exec_lo, 0")
    a(f"v_or_b32 v{Q+6}, v5, v6")
    a(f"v_lshrrev_b32 v{Q+7}, 16, v4")
    a("s_mov_b32 exec_lo, -1")
    a("s_nop 4")
    a(f"v_mfma_f32_32x32x16_bf16 {vr(SA,16)}, {vr(KB[0],4)}, {vr(Q,4)}, 0")
    a(f"v_mfma_f32_32x32x16_bf16 {vr(SA,16)}, {vr(KB[0]+4,4)}, {vr(Q+4,4)}, {vr(SA,16)}")
    a("s_nop 11")
    a.raw(".p2align 6")
    a.label("K2_LOOP")
    for b in range(8):
        e = b & 1
        Sc, Sn = S[e], S[1 - e]
        Kn, Kf = KB[1 - e], KB[e]
        Vc, Vp = VB[e], VB[1 - e]
        def E(i):
            a(f"v_exp_f32 v{Sc+i}, v{Sc+i}")
        def C(i):
            a(f"v_cvt_pk_bf16_f32 v{P+i}, v{Sc+2*i}, v{Sc+2*i+1}")
        def addr(blk):
            return (V_CUR, blk * 4096) if blk < 8 else (V_NXT, (blk - 8) * 4096)
        if b == 4:
            a("s_waitcnt vmcnt(0) lgkmcnt(0)")
            a("s_barrier")
            a(f"s_add_u32 m0, s{S_PRV}, s{S_W4K}")
            a(f"s_add_u32 s{S_SOFF}, s{S_SOFF}, {K2_STAGE}")
        else:
            a("s_waitcnt lgkmcnt(0)")
        a(f"v_mfma_f32_32x32x16_bf16 {vr(Sn,16)}, {vr(Kn,4)}, {vr(Q,4)}, 0")
        va, off = addr(b + 2)
        a(f"ds_read_b128 {vr(Kf,4)}, v{va} offset:{off}")
        a(f"ds_read_b128 {vr(Kf+4,4)}, v{va} offset:{off+1024}")
        E(0); E(1); E(2); E(3)
        a(f"v_mfma_f32_32x32x16_bf16 {vr(O,16)}, {vr(Vp+4,4)}, {vr(P+4,4)}, {vr(O,16)}")
        C(0); C(1)
        va, off = addr(b + 1)
        a(f"ds_read_b128 {vr(Vp,4)}, v{va} offset:{off+2048}")
        a(f"ds_read_b128 {vr(Vp+4,4)}, v{va} offset:{off+3072}")
        E(4); E(5); E(6)
        a(f"v_mfma_f32_32x32x16_bf16 {vr(Sn,16)}, {vr(Kn+4,4)}, {vr(Q+4,4)}, {vr(Sn,16)}")
        E(7); C(2); C(3)
        if b >= 4:
            a(f"buffer_load_dwordx4 v{V_DM}, s[4:7], s{S_SOFF} offen offset:{(b-4)*1024} lds")
        E(8); E(9); E(10)
        a(f"v_mfma_f32_32x32x16_bf16 {vr(O,16)}, {vr(Vc,4)}, {vr(P,4)}, {vr(O,16)}")
        E(11); C(4); C(5)
        if b == 7:
            a(f"s_mov_b32 s{S_T}, s{S_CUR}")
            a(f"s_mov_b32 s{S_CUR}, s{S_NXT}")
            a(f"s_mov_b32 s{S_NXT}, s{S_PRV}")
            a(f"s_mov_b32 s{S_PRV}, s{S_T}")
            a(f"v_add_u32 v{V_CUR}, s{S_CUR}, v{V_L16}")
            a(f"v_add_u32 v{V_NXT}, s{S_NXT}, v{V_L16}")
            a(f"s_add_u32 s{S_ST}, s{S_ST}, 1")
            a(f"s_cmp_lt_u32 s{S_ST}, 8")
        E(12); E(13); E(14); E(15); C(6); C(7)
    a("s_cbranch_scc1 K2_LOOP")
    a("s_nop 1")
    a(f"v_mfma_f32_32x32x16_bf16 {vr(O,16)}, {vr(VB[1]+4,4)}, {vr(P+4,4)}, {vr(O,16)}")
    a("s_waitcnt vmcnt(0) lgkmcnt(0)")
    a("s_nop 15")
    a(f"v_mov_b32 v4, v{O+12}")
    a(f"v_mov_b32 v5, v{O+12}")
    a("s_nop 1")
    a("v_permlane32_swap_b32 v4, v5")
    a("s_nop 1")
    a("v_rcp_f32 v4, v5")
    a(f"v_sub_f32 v6, 1.0, v{V_G}")
    a(f"s_cmp_ge_u32 s{S_HH}, 16")
    a("s_cselect_b64 vcc, -1, 0")
    a("s_nop 1")
    a(f"v_cndmask_b32 v6, v{V_G}, v6, vcc")
    a("v_mul_f32 v4, v4, v6")
    for r in range(16):
        a(f"v_mul_f32 v{O+r}, v{O+r}, v4")
    for m in range(8):
        a(f"v_cvt_pk_bf16_f32 v{P+m}, v{O+2*m}, v{O+2*m+1}")
    a("s_mov_b32 exec_lo, 0")
    a(f"v_mov_b32 v{P+6}, 0")
    a(f"v_mov_b32 v{P+7}, 0")
    a("s_mov_b32 exec_lo, -1")
    a(f"s_lshl_b32 s53, s{S_TT}, 5")
    a(f"s_add_u32 s53, s53, s{S_HH}")
    a("s_lshl_b32 s53, s53, 11")
    a(f"s_add_u32 s53, s53, {OF_BASE}")
    a(f"buffer_store_dwordx4 {vr(P,4)}, v{V_L16}, s[12:15], s53 offen")
    a(f"buffer_store_dwordx4 {vr(P+4,4)}, v{V_L16}, s[12:15], s53 offen offset:1024")
    a.label("K2_END")
    a("s_endpgm")
    return a.text() + kd(name, 112, 64, 112)

K3_LDS = 4 * 3 * 4096

def gen_k3():
    a = Asm()
    name = "oproj_kernel"
    head(a, name)
    S_TG, S_FG, S_W, S_T = 40, 41, 42, 44
    a("s_cmp_ge_u32 s2, 224")
    a("s_cbranch_scc1 K3_END")
    a("s_load_dwordx2 s[36:37], s[0:1], 56")
    a("s_load_dwordx2 s[38:39], s[0:1], 72")
    a(f"s_mul_i32 s{S_TG}, s2, 9363")
    a(f"s_lshr_b32 s{S_TG}, s{S_TG}, 16")
    a(f"s_mul_i32 s{S_T}, s{S_TG}, 7")
    a(f"s_sub_u32 s{S_FG}, s2, s{S_T}")
    a("v_lshrrev_b32 v1, 6, v0")
    a("v_and_b32 v2, 63, v0")
    a(f"v_readfirstlane_b32 s{S_W}, v1")
    a("v_lshlrev_b32 v3, 4, v2")
    a("s_nop 3")
    a(f"s_lshr_b32 s45, s{S_W}, 1")
    a(f"s_and_b32 s46, s{S_W}, 1")
    for b in range(2):
        a(f"s_xor_b32 s{S_T}, s46, {b}")
        a(f"s_lshl_b32 s47, s{S_TG}, 1")
        a(f"s_add_u32 s{S_T}, s{S_T}, s47")
        a(f"s_lshl_b32 s{S_T}, s{S_T}, 16")
        a(f"s_lshl_b32 s47, s{S_W}, 14")
        a(f"s_add_u32 s{S_T}, s{S_T}, s47")
        a(f"s_add_u32 s{48+b}, s{S_T}, {OF_BASE}")
    for f in range(2):
        a(f"s_xor_b32 s{S_T}, s45, {f}")
        a(f"s_lshl_b32 s47, s{S_FG}, 1")
        a(f"s_add_u32 s{S_T}, s{S_T}, s47")
        a(f"s_lshl_b32 s{S_T}, s{S_T}, 16")
        a(f"s_lshl_b32 s47, s{S_W}, 14")
        a(f"s_add_u32 s{S_T}, s{S_T}, s47")
        a(f"s_add_u32 s{50+f}, s{S_T}, {WOF_BASE}")
    a("s_waitcnt lgkmcnt(0)")
    srd(a, 12, 38, 39, WS_SIZE)
    srd(a, 16, 36, 37, OUT_BYTES)
    def dst(n):
        return vr(16 + 4 * n, 4) if n < 48 else ar(64 + 4 * (n - 48), 4)
    vm = Cnt()
    n = 0
    order = []
    for i in range(8):
        for fr in range(2):
            if i % 2 == 0 and fr == 0 and i > 0:
                for s in range(48, 52):
                    a(f"s_add_u32 s{s}, s{s}, 4096")
            off = (i % 2) * 2048 + fr * 1024
            regs = []
            for s in (48, 50, 49, 51):
                a(f"buffer_load_dwordx4 {dst(n)}, v3, s[12:15], s{s} offen offset:{off}")
                vm.issue(n)
                regs.append(n)
                n += 1
            order.append(regs)
    for r in range(64):
        a(f"v_accvgpr_write_b32 a{r}, 0")
    for regs in order:
        o0, w0, o1, w1 = regs
        k = vm.need(w0)
        a(f"s_waitcnt vmcnt({k})")
        a(f"v_mfma_f32_32x32x16_bf16 {ar(0,16)}, {dst(w0)}, {dst(o0)}, {ar(0,16)}")
        k = vm.need(o1)
        a(f"s_waitcnt vmcnt({k})")
        a(f"v_mfma_f32_32x32x16_bf16 {ar(16,16)}, {dst(w0)}, {dst(o1)}, {ar(16,16)}")
        k = vm.need(w1)
        a(f"s_waitcnt vmcnt({k})")
        a(f"v_mfma_f32_32x32x16_bf16 {ar(32,16)}, {dst(w1)}, {dst(o0)}, {ar(32,16)}")
        a(f"v_mfma_f32_32x32x16_bf16 {ar(48,16)}, {dst(w1)}, {dst(o1)}, {ar(48,16)}")
    for nn in range(1, 4):
        a(f"s_xor_b32 s{S_T}, s{S_W}, {nn}")
        a(f"s_mul_i32 s{S_T}, s{S_T}, {3*4096}")
        a(f"v_add_u32 v{4+nn}, s{S_T}, v3")
    a(f"s_mul_i32 s{S_T}, s{S_W}, {3*4096}")
    a(f"v_add_u32 v4, s{S_T}, v3")
    a("s_nop 7")
    a("s_nop 7")
    for nn in range(1, 4):
        for q in range(4):
            a(f"ds_write_b128 v{4+nn}, {ar(16*nn + 4*q, 4)} offset:{(nn-1)*4096 + q*1024}")
    a("s_waitcnt lgkmcnt(0)")
    a("s_barrier")
    for nn in range(3):
        for q in range(4):
            a(f"ds_read_b128 {vr(16 + 16*nn + 4*q, 4)}, v4 offset:{nn*4096 + q*1024}")
    for r in range(16):
        a(f"v_accvgpr_read_b32 v{64+r}, a{r}")
    a("v_and_b32 v5, 31, v2")
    a(f"s_lshl_b32 s{S_T}, s{S_TG}, 6")
    a("s_lshl_b32 s47, s46, 5")
    a(f"s_add_u32 s{S_T}, s{S_T}, s47")
    a(f"v_add_u32 v5, s{S_T}, v5")
    a("v_mul_u32_u24 v5, 896, v5")
    a("v_lshrrev_b32 v6, 5, v2")
    a("v_lshl_add_u32 v5, v6, 3, v5")
    a(f"s_lshl_b32 s{S_T}, s{S_FG}, 7")
    a("s_lshl_b32 s47, s45, 6")
    a(f"s_add_u32 s{S_T}, s{S_T}, s47")
    a("s_waitcnt lgkmcnt(0)")
    for r in range(16):
        a(f"v_add_f32 v{64+r}, v{64+r}, v{16+r}")
        a(f"v_add_f32 v{32+r}, v{32+r}, v{48+r}")
    for r in range(16):
        a(f"v_add_f32 v{64+r}, v{64+r}, v{32+r}")
    for m in range(8):
        a(f"v_cvt_pk_bf16_f32 v{80+m}, v{64+2*m}, v{64+2*m+1}")
    for g in range(4):
        a(f"buffer_store_dwordx2 {vr(80+2*g,2)}, v5, s[16:19], s{S_T} offen offset:{16*g}")
    a.label("K3_END")
    a("s_endpgm")
    return a.text() + kd(name, 208 + 128, 64, 208)

def main():
    hdr = open("cdna_kernels/" + NAME + ".s.ref").read().split("\n")
    top = [l for l in hdr if l.startswith(";") and "@launch" not in l and "Override" not in l and "grid=ceil" not in l]
    out = "\n".join(top[:11]) + "\n"
    out += f"; @launch kernel=qkv_kernel grid=(256,1,1) block=(512,1,1) lds={K1_LDS}\n"
    out += f"; @launch kernel=attn_kernel grid=(256,1,1) block=(512,1,1) lds={K2_LDS}\n"
    out += f"; @launch kernel=oproj_kernel grid=(224,1,1) block=(256,1,1) lds={K3_LDS}\n"
    out += '.amdgcn_target "amdgcn-amd-amdhsa--gfx950"\n'
    out += gen_k1() + gen_k2() + gen_k3()
    path = sys.argv[1] if len(sys.argv) > 1 else "cdna_kernels/" + NAME + ".s"
    open(path, "w").write(out)

if __name__ == "__main__":
    main()
```

```python
import struct, sys, math

NAME = "gated_mix__softmax_full_mha__softmax_full_mha__prompt"
KNAME = NAME + "_kernel"

def f32hex(x):
    return "0x%08x" % struct.unpack("<I", struct.pack("<f", x))[0]

class Asm:
    def __init__(self):
        self.lines = []
    def __call__(self, s):
        for ln in s.strip("\n").split("\n"):
            self.lines.append("    " + ln.strip())
    def label(self, l):
        self.lines.append(l + ":")
    def raw(self, s):
        self.lines.append(s)
    def text(self):
        return "\n".join(self.lines) + "\n"

class Cnt:
    def __init__(self):
        self.q = []
    def issue(self, tag, n=1):
        for _ in range(n):
            self.q.append(tag)
    def need(self, *tags):
        idx = -1
        for i, t in enumerate(self.q):
            if t in tags:
                idx = i
        if idx < 0:
            return None
        n = len(self.q) - 1 - idx
        self.q = self.q[idx + 1:]
        return n
    def clear(self):
        self.q = []

def vr(lo, n):
    return f"v[{lo}:{lo+n-1}]"
def ar(lo, n):
    return f"a[{lo}:{lo+n-1}]"

KV_BASE = 0
OF_BASE = 8 << 20
F2_BASE = 12 << 20
F3_BASE = (12 << 20) + (64 << 10)
WS_SIZE = 13 << 20
X_BYTES = 2048 * 448 * 2
W_BYTES = 448 * 1344 * 2
WO_BYTES = 448 * 448 * 2
OUT_BYTES = 2048 * 448 * 2
OOB = 0x40000000
QSCALE = math.log2(math.e) / math.sqrt(28.0)
SPIN_MAX = 200000

L_W = 0
L_XB = 86016
L_G = 118784
L_XA = 126976
L_RING = [L_XA, 0, 32768]
L_WO = [65536, 96256]
L_OB = 0
L_RED = L_XA
L_FB = L_XA + 32768
LDS_BYTES = L_FB + 64

STAMP = False
OPT = set()
STAMP_BASE = 64 << 20
STR = [78 + 2*i for i in range(12)] + [36, 38, 40, 42]
def pstamp(a, i):
    if STAMP and "pst" in OPT:
        a(f"s_memtime s[{STR[i]}:{STR[i]+1}]")
def stamp(a, i, real=False):
    if not STAMP: return
    if "pst" in OPT and i >= 2: return
    a(f"{'s_memrealtime' if real else 's_memtime'} s[{STR[i]}:{STR[i]+1}]")
def stamp_flush(a, n, s_w):
    if not STAMP: return
    a("s_waitcnt vmcnt(0) lgkmcnt(0)")
    a(f"s_memtime s[{STR[n]}:{STR[n]+1}]")
    a(f"s_memrealtime s[{STR[n+1]}:{STR[n+1]+1}]")
    a("s_waitcnt lgkmcnt(0)")
    a("s_mov_b32 s14, 0x10000000")
    a("s_lshl_b32 s59, s2, 3")
    a(f"s_add_u32 s59, s59, s{s_w}")
    a("s_lshl_b32 s59, s59, 7")
    a(f"s_add_u32 s59, s59, {STAMP_BASE}")
    a("v_mov_b32 v1, 0")
    a("s_mov_b64 exec, 1")
    for i in range(n + 2):
        a(f"v_mov_b32 v2, s{STR[i]}")
        a(f"v_mov_b32 v3, s{STR[i]+1}")
        a(f"buffer_store_dwordx2 v[2:3], v1, s[12:15], s59 offen offset:{8*i}")
        a("s_nop 1")

def srd(a, d, lo, hi, nbytes):
    a(f"s_mov_b32 s{d}, s{lo}")
    a(f"s_mov_b32 s{d+1}, s{hi}")
    a(f"s_mov_b32 s{d+2}, {nbytes}")
    a(f"s_mov_b32 s{d+3}, 0x00020000")

def gen():
    a = Asm()
    a.raw(".text")
    a.raw(f".globl {KNAME}")
    a.raw(".p2align 8")
    a.raw(f".type {KNAME},@function")
    a.label(KNAME)
    SX, SW, SWS, SWO, SG, SKV, SOUT, SDBG = 4, 8, 12, 16, 20, 24, 28, 32
    S_HH, S_QB, S_W, S_T, S_TT, S_R = 56, 57, 58, 59, 60, 61
    S_A, S_B, S_C = 62, 63, 64
    S_XA, S_XB = 65, 66
    S_TAG = 68
    S_RDY = 70
    S_ST, S_CUR, S_NXT, S_PRV = 71, 72, 73, 74
    S_SPIN = 75
    S_W4K = 76
    S_FB = 77
    V_LANE, V_L16 = 2, 3
    a("s_cmp_ge_u32 s2, 256")
    a("s_cbranch_scc1 L_END")
    stamp(a, 0); stamp(a, 1, True)
    a("s_load_dwordx16 s[36:51], s[0:1], 0")
    a("s_load_dwordx4 s[52:55], s[0:1], 64")
    a(f"s_memrealtime s[{S_TAG}:{S_TAG+1}]")
    a(f"s_and_b32 s{S_T}, s2, 7")
    a(f"s_lshl_b32 s{S_HH}, s{S_T}, 2")
    a(f"s_lshr_b32 s{S_A}, s2, 3")
    a(f"s_lshr_b32 s{S_QB}, s{S_A}, 2")
    a(f"s_and_b32 s{S_A}, s{S_A}, 3")
    a(f"s_add_u32 s{S_HH}, s{S_HH}, s{S_A}")
    a(f"s_lshl_b32 s{S_A}, s{S_A}, 1")
    a(f"s_add_u32 s{S_R}, s{S_QB}, s{S_A}")
    a(f"s_add_u32 s{S_R}, s{S_R}, s{S_T}")
    a(f"s_mul_i32 s{S_A}, s{S_R}, 37")
    a(f"s_lshr_b32 s{S_A}, s{S_A}, 8")
    a(f"s_mul_i32 s{S_A}, s{S_A}, 7")
    a(f"s_sub_u32 s{S_R}, s{S_R}, s{S_A}")
    if "norot" in OPT: a(f"s_mov_b32 s{S_R}, 0")
    a("v_lshrrev_b32 v1, 6, v0")
    a(f"v_and_b32 v{V_LANE}, 63, v0")
    a(f"v_readfirstlane_b32 s{S_W}, v1")
    a(f"v_lshlrev_b32 v{V_L16}, 4, v{V_LANE}")
    a(f"s_lshl_b32 s{S_TT}, s{S_QB}, 3")
    a("s_nop 2")
    a(f"s_add_u32 s{S_TT}, s{S_TT}, s{S_W}")
    a(f"s_lshl_b32 s{S_W4K}, s{S_W}, 12")
    a(f"s_add_u32 s{S_XA}, s{S_W4K}, {L_XA}")
    a(f"s_add_u32 s{S_XB}, s{S_W4K}, {L_XB}")

    ACCQ, ACCK, ACCV = 16, 32, 48
    XF, GF = 64, 96
    V_XD, V_XR, V_WD, V_WR, V_GR, V_GA, V_GD = 104, 108, 112, 113, 115, 116, 117
    a(f"v_lshrrev_b32 v4, 3, v{V_LANE}")
    a(f"v_and_b32 v5, 7, v{V_LANE}")
    a(f"s_lshl_b32 s{S_T}, s{S_TT}, 5")
    for i in range(4):
        a(f"v_add_u32 v6, {8*i}, v4")
        a("v_lshrrev_b32 v7, 1, v6")
        a("v_and_b32 v7, 7, v7")
        a("v_xor_b32 v7, v7, v5")
        a(f"v_add_u32 v6, s{S_T}, v6")
        a("v_mul_u32_u24 v6, 896, v6")
        a(f"v_lshl_add_u32 v{V_XD+i}, v7, 4, v6")
    a(f"v_mul_u32_u24 v5, 43, v{V_LANE}")
    a("v_lshrrev_b32 v5, 9, v5")
    a("v_mul_u32_u24 v6, 12, v5")
    a(f"v_sub_u32 v6, v{V_LANE}, v6")
    a("v_lshl_add_u32 v5, v1, 2, v5")
    a("v_mul_u32_u24 v5, 2688, v5")
    a("v_lshrrev_b32 v7, 2, v6")
    a("v_mul_u32_u24 v7, 896, v7")
    a("v_add_u32 v5, v5, v7")
    a("v_and_b32 v6, 3, v6")
    a("v_lshl_add_u32 v5, v6, 4, v5")
    a(f"s_and_b32 s{S_T}, s{S_HH}, 15")
    a(f"s_mul_i32 s{S_T}, s{S_T}, 56")
    a(f"v_add_u32 v{V_WD}, s{S_T}, v5")
    a(f"s_lshl_b32 s{S_T}, s{S_R}, 3")
    a(f"v_add_u32 v5, s{S_T}, v{V_LANE}")
    a("v_subrev_u32 v6, 56, v5")
    a("v_min_u32 v5, v5, v6")
    a(f"v_lshlrev_b32 v{V_GD}, 4, v5")
    pstamp(a, 2)
    a("s_waitcnt lgkmcnt(0)")
    pstamp(a, 3)
    srd(a, SX, 36, 37, X_BYTES)
    a(f"s_cmp_ge_u32 s{S_HH}, 16")
    a(f"s_cselect_b32 s{SW}, s44, s38")
    a(f"s_cselect_b32 s{SW+1}, s45, s39")
    a(f"s_mov_b32 s{SW+2}, {W_BYTES}")
    a(f"s_mov_b32 s{SW+3}, 0x00020000")

    vm = Cnt()
    lg = Cnt()
    def wait_vm(*tags):
        n = vm.need(*tags)
        if n is not None:
            a(f"s_waitcnt vmcnt({n})")
    def wait_lg(*tags):
        n = lg.need(*tags)
        if n is not None:
            a(f"s_waitcnt lgkmcnt({min(n, 15)})")

    def dma_stage(s):
        a(f"s_add_u32 s{S_A}, s{S_R}, {s}")
        a(f"s_sub_u32 s{S_B}, s{S_A}, 7")
        a(f"s_min_u32 s{S_A}, s{S_A}, s{S_B}")
        a(f"s_lshl_b32 s{S_B}, s{S_A}, 7")
        base = S_XA if (s & 1) == 0 else S_XB
        for i in range(4):
            a(f"s_add_u32 m0, s{base}, {i*1024}")
            if i == 0:
                a(f"s_mul_i32 s{S_A}, s{S_A}, {64*2688}")
            else:
                a("s_nop 0")
            a(f"buffer_load_dwordx4 v{V_XD+i}, s[{SX}:{SX+3}], s{S_B} offen lds")
            vm.issue(f"D{s}")
        a("s_mov_b32 exec_hi, 0xffff")
        a(f"s_mul_i32 s{S_C}, s{S_W}, 768")
        for rho in range(2):
            a(f"s_add_u32 m0, s{S_C}, {(64*s + 32*rho)*192}")
            a(f"s_add_u32 s{S_B}, s{S_A}, {32*rho*2688}")
            a(f"buffer_load_dwordx4 v{V_WD}, s[{SW}:{SW+3}], s{S_B} offen lds")
            vm.issue(f"D{s}")
        a("s_mov_b32 exec_hi, -1")

    dma_stage(0)
    pstamp(a, 4)
    srd(a, SG, 48, 49, 896)
    a(f"s_mov_b32 m0, {L_G}")
    a("s_nop 0")
    a(f"buffer_load_dwordx4 v{V_GD}, s[{SG}:{SG+3}], 0 offen lds")
    vm.issue("D0")
    dma_stage(1)
    pstamp(a, 5)
    srd(a, SWS, 54, 55, WS_SIZE)
    srd(a, SOUT, 50, 51, OUT_BYTES)
    srd(a, SDBG, 52, 53, 256)
    a(f"s_cmp_ge_u32 s{S_W}, 4")
    a(f"s_cselect_b32 s{SWO}, s46, s40")
    a(f"s_cselect_b32 s{SWO+1}, s47, s41")
    a(f"s_mov_b32 s{SWO+2}, {WO_BYTES}")
    a(f"s_mov_b32 s{SWO+3}, 0x00020000")
    a(f"s_lshl_b32 s{S_T}, s{S_HH}, 18")
    a(f"s_add_u32 s{SKV}, s54, s{S_T}")
    a(f"s_addc_u32 s{SKV+1}, s55, 0")
    a(f"s_mov_b32 s{SKV+2}, 262144")
    a(f"s_mov_b32 s{SKV+3}, 0x00020000")
    a(f"s_or_b32 s{S_TAG}, s{S_TAG}, 1")
    a(f"s_or_b32 s{S_T}, s2, s{S_W}")
    a(f"s_cmp_lg_u32 s{S_T}, 0")
    a("s_cbranch_scc1 L_NOTAG")
    a(f"v_mov_b32 v4, s{S_TAG}")
    a(f"v_mov_b32 v5, s{S_TAG+1}")
    a("v_mov_b32 v6, 0")
    a("s_mov_b64 exec, 1")
    a(f"buffer_store_dwordx2 v[4:5], v6, s[{SDBG}:{SDBG+3}], 0 offen sc1")
    a("s_mov_b64 exec, -1")
    a.label("L_NOTAG")
    a(f"v_and_b32 v4, 31, v{V_LANE}")
    a(f"v_lshrrev_b32 v5, 5, v{V_LANE}")
    a("v_lshrrev_b32 v6, 1, v4")
    a("v_and_b32 v6, 7, v6")
    a("v_lshlrev_b32 v7, 7, v4")
    a(f"v_add_u32 v7, s{S_XB}, v7")
    for j in range(4):
        a(f"v_add_u32 v8, {2*j}, v5")
        a("v_xor_b32 v8, v8, v6")
        a(f"v_lshl_add_u32 v{V_XR+j}, v8, 4, v7")
    a("v_lshlrev_b32 v7, 4, v5")
    a(f"v_add_u32 v{V_GR}, {L_G}, v7")
    a(f"v_bfe_u32 v6, v{V_LANE}, 2, 2")
    a("v_lshl_add_u32 v6, v5, 3, v6")
    a("v_mul_u32_u24 v6, 192, v6")
    a(f"v_bfe_u32 v7, v{V_LANE}, 4, 1")
    a("v_lshl_add_u32 v6, v7, 5, v6")
    a(f"v_and_b32 v7, 3, v{V_LANE}")
    a(f"v_lshl_add_u32 v{V_WR}, v7, 3, v6")
    a(f"v_add_u32 v{V_WR+1}, {14*3072}, v{V_WR}")
    for r in range(16, 64):
        a(f"v_mov_b32 v{r}, 0")
    a(f"v_mov_b32 v{V_GA}, 0")

    def read_x(s):
        off = (L_XA - L_XB) if (s & 1) == 0 else 0
        for j in range(4):
            a(f"ds_read_b128 {vr(XF + (s&1)*16 + 4*j, 4)}, v{V_XR+j} offset:{off}")
            lg.issue(f"XR{s}")
    def read_w(ks):
        base = V_WR if ks < 14 else V_WR + 1
        off = (ks % 14) * 3072
        st = ks & 1
        for seg in range(3 if "p1notr" not in OPT else 0):
            d = st * 12 + seg * 4
            a(f"ds_read_b64_tr_b16 {ar(d,2)}, v{base} offset:{off + seg*64}")
            a(f"ds_read_b64_tr_b16 {ar(d+2,2)}, v{base} offset:{off + seg*64 + 768}")
            lg.issue(f"WR{ks}", 2)
        if "nodot" not in OPT:
            a(f"ds_read_b128 {vr(GF + st*4, 4)}, v{V_GR} offset:{ks*32}")
            lg.issue(f"WR{ks}")

    stamp(a, 2)
    pstamp(a, 6)
    wait_vm("D0")
    pstamp(a, 7)
    a("s_barrier")
    pstamp(a, 8)
    stamp(a, 3)
    read_x(0)
    read_w(0)
    wait_lg("XR0")
    dma_stage(2)
    pstamp(a, 9)
    V_TAGV = 118
    for ks in range(28):
        s, j = divmod(ks, 4)
        if j == 3 and s + 1 < 7:
            wait_vm(f"D{s+1}")
            if "p1nobar" not in OPT: a("s_barrier")
            read_x(s + 1)
        if ks + 1 < 28:
            read_w(ks + 1)
        wait_lg(f"WR{ks}", f"XR{s}")
        st = ks & 1
        x = vr(XF + (s & 1) * 16 + 4 * j, 4)
        w = lambda seg: ar(st * 12 + seg * 4, 4)
        a(f"v_mfma_f32_32x32x16_bf16 {vr(ACCK,16)}, {w(1)}, {x}, {vr(ACCK,16)}")
        a(f"v_mfma_f32_32x32x16_bf16 {vr(ACCV,16)}, {x}, {w(2)}, {vr(ACCV,16)}")
        a(f"v_mfma_f32_32x32x16_bf16 {vr(ACCQ,16)}, {w(0)}, {x}, {vr(ACCQ,16)}")
        for d in range(4 if "nodot" not in OPT else 0):
            a(f"v_dot2c_f32_bf16 v{V_GA}, v{XF + (s&1)*16 + 4*j + d}, v{GF + st*4 + d}")
        if j == 3 and s + 3 < 7:
            wait_lg(f"XR{s+1}")
            if "p1nodma" not in OPT: dma_stage(s + 3)
        if ks == 20:
            a("v_mov_b32 v4, 0")
            a(f"buffer_load_dwordx2 {vr(V_TAGV,2)}, v4, s[{SDBG}:{SDBG+3}], 0 offen sc1")
            vm.issue("TAG")
    stamp(a, 4)
    pstamp(a, 10)
    PK = 64
    a("s_nop 5")
    for m in range(8):
        a(f"v_cvt_pk_bf16_f32 v{PK+m}, v{ACCK+2*m}, v{ACCK+2*m+1}")
    for m in range(8):
        a(f"v_cvt_pk_bf16_f32 v{PK+8+m}, v{ACCV+2*m}, v{ACCV+2*m+1}")
    a("s_mov_b32 exec_lo, 0")
    a(f"v_mov_b32 v{PK+6}, 0x3f803f80")
    a(f"v_mov_b32 v{PK+7}, 0x00003f80")
    a("s_mov_b32 exec_lo, 0x10000000")
    a("s_mov_b32 exec_hi, 0x10000000")
    for m in range(8):
        a(f"v_mov_b32 v{PK+8+m}, 0x3f803f80")
    a("s_mov_b64 exec, -1")
    a(f"s_lshl_b32 s{S_A}, s{S_TT}, 12")
    a(f"v_add_u32 v4, s{S_XA}, v{V_L16}")
    for m in range(4):
        a(f"buffer_store_dwordx4 {vr(PK+4*m,4)}, v{V_L16}, s[{SKV}:{SKV+3}], s{S_A} offen offset:{1024*m} sc1")
        vm.issue("KVS")
    for m in range(4):
        a(f"ds_write_b128 v4, {vr(PK+4*m,4)} offset:{1024*m}")
    a(f"s_mov_b32 s{S_A}, {f32hex(QSCALE)}")
    for r in range(16):
        a(f"v_mul_f32 v{ACCQ+r}, s{S_A}, v{ACCQ+r}")
    for m in range(8):
        a(f"v_cvt_pk_bf16_f32 v{PK+16+m}, v{ACCQ+2*m}, v{ACCQ+2*m+1}")
    a("s_mov_b32 exec_lo, 0")
    a(f"v_mov_b32 v{PK+16+6}, 0")
    a(f"v_mov_b32 v{PK+16+7}, 0")
    a("s_mov_b32 exec_lo, -1")
    a(f"v_add_u32 v4, s{S_XB}, v{V_L16}")
    a(f"ds_write_b128 v4, {vr(PK+16,4)}")
    a(f"ds_write_b128 v4, {vr(PK+20,4)} offset:1024")
    a(f"v_mov_b32 v5, v{V_GA}")
    a(f"v_mov_b32 v6, v{V_GA}")
    a("s_nop 1")
    a("v_permlane32_swap_b32 v5, v6")
    a(f"s_mov_b32 s{S_B}, {f32hex(-math.log2(math.e))}")
    a(f"s_cmp_ge_u32 s{S_HH}, 16")
    a(f"s_cselect_b32 s{S_A}, {f32hex(math.log2(math.e))}, s{S_B}")
    a("v_add_f32 v5, v5, v6")
    a(f"v_mul_f32 v5, s{S_A}, v5")
    a("v_exp_f32 v5, v5")
    a(f"v_lshlrev_b32 v6, 2, v{V_LANE}")
    a("v_add_f32 v5, 1.0, v5")
    a("v_rcp_f32 v5, v5")
    a(f"v_add_u32 v6, s{S_XB}, v6")
    a("v_mov_b32 v7, 0")
    a("ds_write_b32 v6, v5 offset:2048")
    a(f"v_mov_b32 v6, {L_FB}")
    a("ds_write_b32 v6, v7")
    a("s_waitcnt lgkmcnt(0)")
    a("s_barrier")
    lg.clear()

    Q = [8, 16]
    S = [24, 40]
    O = [56, 72]
    P = 88
    KR, VR = 96, 104
    V_CUR, V_NXT, V_DM, V_GV, V_FP, V_WOD, V_WOR = 112, 113, 114, 115, 116, 117, 120
    V_POLL = 122
    V_KP = 124
    a(f"s_and_b32 s{S_A}, s{S_W}, 3")
    a(f"s_lshr_b32 s{S_B}, s{S_W}, 2")
    a(f"s_lshl_b32 s{S_A}, s{S_A}, 1")
    a(f"s_add_u32 s{S_C}, s{S_A}, s{S_B}")
    a(f"s_xor_b32 s{S_A}, s{S_C}, 1")
    a(f"s_lshl_b32 s{S_T}, s{S_C}, 12")
    a(f"s_add_u32 s{S_T}, s{S_T}, {L_XB}")
    a(f"v_add_u32 v4, s{S_T}, v{V_L16}")
    a(f"v_lshlrev_b32 v6, 2, v{V_LANE}")
    a(f"v_add_u32 v6, s{S_T}, v6")
    a(f"s_lshl_b32 s{S_T}, s{S_A}, 12")
    a(f"s_add_u32 s{S_T}, s{S_T}, {L_XB}")
    a(f"v_add_u32 v5, s{S_T}, v{V_L16}")
    a(f"ds_read_b128 {vr(Q[0],4)}, v4")
    a(f"ds_read_b128 {vr(Q[0]+4,4)}, v4 offset:1024")
    a(f"ds_read_b128 {vr(Q[1],4)}, v5")
    a(f"ds_read_b128 {vr(Q[1]+4,4)}, v5 offset:1024")
    a(f"ds_read_b32 v{V_GV}, v6 offset:2048")
    S_T0 = 67
    a(f"s_mov_b32 s{S_T0}, s{S_C}")
    a(f"s_lshl_b32 s{S_B}, s{S_B}, 12")
    a(f"v_add_u32 v{V_KP}, s{S_B}, v{V_L16}")
    a(f"v_add_u32 v4, {L_RING[0]}, v{V_L16}")
    a(f"ds_read_b128 {vr(KR,4)}, v4")
    a(f"ds_read_b128 {vr(KR+4,4)}, v4 offset:1024")
    a(f"v_add_u32 v{V_DM}, s{S_W4K}, v{V_L16}")
    a(f"s_lshl_b32 s{S_T}, s{S_HH}, 3")
    a(f"s_add_u32 s{S_T}, s{S_T}, s{S_W}")
    a(f"s_lshl_b32 s{S_T}, s{S_T}, 6")
    a(f"s_add_u32 s{S_T}, s{S_T}, {F2_BASE}")
    a(f"v_add_u32 v5, s{S_QB}, v{V_LANE}")
    a("v_and_b32 v5, 7, v5")
    a(f"v_lshl_add_u32 v{V_FP}, v5, 3, s{S_T}")
    a(f"s_mov_b32 s{S_FB}, 0")
    a(f"s_mov_b32 s{S_RDY}, 1")
    a("s_waitcnt lgkmcnt(0)")
    for t in range(2):
        a(f"v_mfma_f32_32x32x16_bf16 {vr(S[t],16)}, {vr(KR,4)}, {vr(Q[t],4)}, 0")
        a(f"v_mfma_f32_32x32x16_bf16 {vr(S[t],16)}, {vr(KR+4,4)}, {vr(Q[t]+4,4)}, {vr(S[t],16)}")
    S_FT0 = 3
    a(f"s_and_b32 s{S_A}, s{S_HH}, 3")
    a(f"s_lshl_b32 s{S_FT0}, s{S_A}, 2")
    a(f"s_cmp_eq_u32 s{S_A}, 3")
    a(f"s_cselect_b32 s{S_FT0}, 11, s{S_FT0}")
    a(f"v_lshrrev_b32 v4, 4, v{V_LANE}")
    a(f"s_and_b32 s{S_A}, s{S_W}, 3")
    a(f"s_lshl_b32 s{S_B}, s{S_A}, 4")
    a(f"v_add_u32 v5, s{S_B}, v4")
    a("v_mul_u32_u24 v5, 896, v5")
    a("v_lshlrev_b32 v4, 2, v4")
    a(f"v_and_b32 v6, 15, v{V_LANE}")
    a("v_xor_b32 v4, v4, v6")
    a("v_lshl_add_u32 v5, v4, 4, v5")
    a(f"s_lshl_b32 s{S_B}, s{S_FT0}, 6")
    a(f"v_add_u32 v{V_WOD}, s{S_B}, v5")
    a(f"v_bfe_u32 v4, v{V_LANE}, 2, 2")
    a(f"v_lshrrev_b32 v5, 5, v{V_LANE}")
    a("v_lshl_add_u32 v5, v5, 2, v4")
    a("v_lshlrev_b32 v5, 8, v5")
    a(f"v_bfe_u32 v6, v{V_LANE}, 4, 1")
    a(f"v_bfe_u32 v7, v{V_LANE}, 1, 1")
    a("v_lshl_add_u32 v6, v6, 1, v7")
    a(f"s_lshl_b32 s{S_B}, s{S_A}, 2")
    a(f"v_add_u32 v6, s{S_B}, v6")
    a("v_lshlrev_b32 v4, 2, v4")
    a("v_xor_b32 v6, v6, v4")
    a("v_lshl_add_u32 v5, v6, 4, v5")
    a(f"v_and_b32 v6, 1, v{V_LANE}")
    a("v_lshl_add_u32 v5, v6, 3, v5")
    a(f"s_lshr_b32 s{S_B}, s{S_W}, 2")
    a(f"s_mul_i32 s{S_B}, s{S_B}, 15360")
    a(f"s_add_u32 s{S_B}, s{S_B}, {L_WO[0]}")
    a(f"v_add_u32 v{V_WOR}, s{S_B}, v5")
    for t in range(2):
        m = 4 + t
        a(f"v_max3_f32 v{m}, v{S[t]}, v{S[t]+1}, v{S[t]+2}")
        for r in range(3, 15, 2):
            a(f"v_max3_f32 v{m}, v{m}, v{S[t]+r}, v{S[t]+r+1}")
        a(f"v_max_f32 v{m}, v{m}, v{S[t]+15}")
    a.label("L_SETM")
    a("v_mov_b32 v6, v4")
    a("v_mov_b32 v7, v5")
    a("s_nop 1")
    a("v_permlane32_swap_b32 v4, v6")
    a("v_permlane32_swap_b32 v5, v7")
    a("s_nop 1")
    a("v_max_f32 v4, v4, v6")
    a("v_max_f32 v5, v5, v7")
    for t in range(2):
        m = 4 + t
        a(f"v_sub_f32 v{m}, 0, v{m}")
        a(f"v_and_b32 v6, 0xffff0000, v{m}")
        a(f"v_sub_f32 v{m}, v{m}, v6")
        a(f"v_and_b32 v7, 0xffff0000, v{m}")
        a(f"v_sub_f32 v{m}, v{m}, v7")
        a("v_lshrrev_b32 v6, 16, v6")
        a("s_mov_b32 exec_lo, 0")
        a(f"v_or_b32 v{Q[t]+6}, v6, v7")
        a(f"v_lshrrev_b32 v{Q[t]+7}, 16, v{m}")
        a("s_mov_b32 exec_lo, -1")
    a(f"s_mov_b32 s{S_ST}, 0")
    a(f"s_mov_b32 s{S_CUR}, {L_RING[0]}")
    a(f"s_mov_b32 s{S_NXT}, {L_RING[1]}")
    a(f"s_mov_b32 s{S_PRV}, {L_RING[2]}")
    a(f"v_add_u32 v{V_CUR}, {L_RING[0]}, v{V_KP}")
    a(f"v_add_u32 v{V_NXT}, {L_RING[1]}, v{V_KP}")
    a(f"ds_read_b128 {vr(KR,4)}, v{V_CUR}")
    a(f"ds_read_b128 {vr(KR+4,4)}, v{V_CUR} offset:1024")
    a(f"ds_read_b128 {vr(VR,4)}, v{V_CUR} offset:2048")
    for t in range(2):
        for r in range(16):
            a(f"v_mov_b32 v{O[t]+r}, 0")
    for r in range(4):
        a(f"v_mov_b32 v{P+4+r}, 0")
        a(f"v_mov_b32 v{VR+4+r}, 0")
    a("s_waitcnt lgkmcnt(0)")
    a(f"v_mfma_f32_32x32x16_bf16 {vr(S[0],16)}, {vr(KR,4)}, {vr(Q[0],4)}, 0")
    a(f"v_mfma_f32_32x32x16_bf16 {vr(S[0],16)}, {vr(KR+4,4)}, {vr(Q[0]+4,4)}, {vr(S[0],16)}")
    stamp(a, 5)
    a(f"s_cmp_lg_u32 s{S_FB}, 0")
    a("s_nop 9")
    a("s_cbranch_scc1 L_LOOP")

    uid = [0]
    def poll_until(bit_expr_setup, label):
        a(f"s_mov_b32 s{S_SPIN}, {SPIN_MAX}")
        a.label(label)
        a(f"s_bitcmp1_b32 s{S_RDY}, s{S_C}")
        a(f"s_cbranch_scc1 {label}_OK")
        a(f"buffer_load_dwordx2 {vr(V_POLL,2)}, v{V_FP}, s[{SWS}:{SWS+3}], 0 offen sc1")
        a("s_waitcnt vmcnt(0)")
        a(f"v_cmp_eq_u64 vcc, s[{S_TAG}:{S_TAG+1}], {vr(V_POLL,2)}")
        a(f"s_sub_u32 s{S_SPIN}, s{S_SPIN}, 1")
        a("s_nop 2")
        a(f"s_and_b32 s{S_RDY}, vcc_lo, 0xff")
        a(f"s_cmp_lg_u32 s{S_SPIN}, 0")
        a(f"s_cbranch_scc1 {label}")
        a.label(label + "_OK")

    def kv_dma_setup(stage_sgpr_plus, slot_sgpr):
        a(f"s_add_u32 s{S_A}, s{S_QB}, s{S_C}")
        a(f"s_and_b32 s{S_A}, s{S_A}, 7")
        a(f"s_lshl_b32 s{S_A}, s{S_A}, 15")
        a(f"s_add_u32 m0, s{slot_sgpr}, s{S_W4K}")
        a("s_nop 0")
        for i in range(4):
            a(f"buffer_load_dwordx4 v{V_DM}, s[{SKV}:{SKV+3}], s{S_A} offen offset:{i*1024} sc1 lds")

    def wo_dma():
        a(f"s_and_b32 s{S_A}, s{S_ST}, 1")
        a(f"s_mul_i32 s{S_A}, s{S_A}, 30720")
        a(f"s_lshr_b32 s{S_B}, s{S_W}, 2")
        a(f"s_mul_i32 s{S_B}, s{S_B}, 15360")
        a(f"s_add_u32 s{S_A}, s{S_A}, s{S_B}")
        a(f"s_and_b32 s{S_B}, s{S_W}, 3")
        a(f"s_lshl_b32 s{S_C}, s{S_B}, 12")
        a(f"s_add_u32 s{S_A}, s{S_A}, s{S_C}")
        a(f"s_add_u32 s{S_A}, s{S_A}, {L_WO[0]}")
        a(f"s_mul_i32 s{S_C}, s{S_ST}, {56*896}")
        uid[0] += 1
        for q in range(4):
            if q == 3:
                a(f"s_cmp_eq_u32 s{S_B}, 3")
                a(f"s_cbranch_scc1 L_WOD{uid[0]}")
            a(f"s_add_u32 m0, s{S_A}, {q*1024}")
            a(f"s_add_u32 s{S_T}, s{S_C}, {q*3584}")
            a(f"buffer_load_dwordx4 v{V_WOD}, s[{SWO}:{SWO+3}], s{S_T} offen lds")
        a.label(f"L_WOD{uid[0]}")

    def wo_read(c):
        for hl in range(2):
            for fr in range(2):
                d = (c * 4 + hl * 2 + fr) * 4
                off = (c & 1) * 30720 + (28 * hl + 16 * fr) * 256
                a(f"ds_read_b64_tr_b16 {ar(d,2)}, v{V_WOR} offset:{off}")
                a(f"ds_read_b64_tr_b16 {ar(d+2,2)}, v{V_WOR} offset:{off + 2048}")

    def stage(first):
        sfx = "F" if first else "L"
        for u in range(8):
            n, T = u >> 1, u & 1
            Sc, Sn = S[T], S[1 - T]
            def E(i):
                a(f"v_exp_f32 v{Sc+i}, v{Sc+i}")
            def C(i):
                a(f"v_cvt_pk_bf16_f32 v{P+i}, v{Sc+2*i}, v{Sc+2*i+1}")
            def addr(nn):
                return (V_CUR, nn * 8192) if nn < 4 else (V_NXT, 0)
            if u == 6:
                a("s_waitcnt vmcnt(0) lgkmcnt(0)")
                a("s_barrier")
            elif T == 1:
                a("s_waitcnt lgkmcnt(2)")
            a(f"v_mfma_f32_32x32x16_bf16 {vr(Sn,16)}, {vr(KR,4)}, {vr(Q[1-T],4)}, 0")
            if T == 0:
                va, off = addr(n + 1)
                a(f"ds_read_b128 {vr(KR,4)}, v{va} offset:{off}")
            E(0); E(1); E(2); E(3)
            if T == 1:
                a("s_waitcnt lgkmcnt(1)")
            a(f"v_mfma_f32_32x32x16_bf16 {vr(O[1-T],16)}, {vr(VR+4,4)}, {vr(P+4,4)}, {vr(O[1-T],16)}")
            if T == 0:
                va, off = addr(n)
                a(f"ds_read_b128 {vr(VR+4,4)}, v{va} offset:{off+3072}")
            C(0); C(1)
            E(4); E(5); E(6)
            if T == 1:
                a("s_waitcnt lgkmcnt(0)")
            a(f"v_mfma_f32_32x32x16_bf16 {vr(Sn,16)}, {vr(KR+4,4)}, {vr(Q[1-T]+4,4)}, {vr(Sn,16)}")
            if T == 0:
                va, off = addr(n + 1)
                a(f"ds_read_b128 {vr(KR+4,4)}, v{va} offset:{off+1024}")
            E(7); C(2); C(3)
            E(8); E(9); E(10)
            if T == 0:
                a("s_waitcnt lgkmcnt(3)")
            a(f"v_mfma_f32_32x32x16_bf16 {vr(O[T],16)}, {vr(VR,4)}, {vr(P,4)}, {vr(O[T],16)}")
            if T == 1:
                va, off = addr(n + 1)
                a(f"ds_read_b128 {vr(VR,4)}, v{va} offset:{off+2048}")
            E(11); C(4); C(5)
            if first and u == 1:
                a("s_waitcnt vmcnt(0)")
                a(f"s_mov_b32 s{S_SPIN}, {SPIN_MAX}")
                a.label("L_TAG")
                a(f"v_readfirstlane_b32 s{S_TAG}, v{V_TAGV}")
                a(f"v_readfirstlane_b32 s{S_TAG+1}, v{V_TAGV+1}")
                a(f"s_sub_u32 s{S_SPIN}, s{S_SPIN}, 1")
                a(f"s_cmp_eq_u32 s{S_SPIN}, 0")
                a("s_cbranch_scc1 L_TAG_OK")
                a(f"s_cmp_lg_u32 s{S_TAG}, 0")
                a("s_cbranch_scc1 L_TAG_OK")
                a("v_mov_b32 v4, 0")
                a(f"buffer_load_dwordx2 {vr(V_TAGV,2)}, v4, s[{SDBG}:{SDBG+3}], 0 offen sc1")
                a("s_waitcnt vmcnt(0)")
                a("s_branch L_TAG")
                a.label("L_TAG_OK")
                a("s_mov_b64 exec, 1")
                a(f"buffer_store_dwordx2 {vr(V_TAGV,2)}, v{V_FP}, s[{SWS}:{SWS+3}], 0 offen sc1")
                a("s_mov_b64 exec, -1")
            if first and u == 3:
                a(f"s_mov_b32 s{S_C}, 1")
                poll_until(None, "L_P1")
                kv_dma_setup(None, S_NXT)
            if u == 6:
                a(f"s_add_u32 s{S_C}, s{S_ST}, 2")
                a(f"s_cmp_ge_u32 s{S_C}, 8")
                a(f"s_cbranch_scc1 L_NODMA{sfx}")
                poll_until(None, f"L_P2{sfx}")
                kv_dma_setup(None, S_PRV)
                a.label(f"L_NODMA{sfx}")
            if u == 7:
                if "nop3" not in OPT:
                    a(f"s_cmp_lg_u32 s{S_FB}, 0")
                    a(f"s_cbranch_scc1 L_WOB{sfx}")
                    wo_dma()
                    if not first:
                        for c in range(7):
                            a(f"s_cmp_eq_u32 s{S_ST}, {c+1}")
                            a(f"s_cbranch_scc1 L_WOR{c}")
                    a.label(f"L_WOB{sfx}")
                a(f"s_mov_b32 s{S_T}, s{S_CUR}")
                a(f"s_mov_b32 s{S_CUR}, s{S_NXT}")
                a(f"s_mov_b32 s{S_NXT}, s{S_PRV}")
                a(f"s_mov_b32 s{S_PRV}, s{S_T}")
                a(f"v_add_u32 v{V_CUR}, s{S_CUR}, v{V_KP}")
                a(f"v_add_u32 v{V_NXT}, s{S_NXT}, v{V_KP}")
                a(f"s_add_u32 s{S_ST}, s{S_ST}, 1")
                a(f"s_cmp_lt_u32 s{S_ST}, 8")
            E(12); E(13); E(14); E(15); C(6); C(7)

    stage(True)
    stamp(a, 6)
    a.raw(".p2align 6")
    a.label("L_LOOP")
    stage(False)
    a("s_cbranch_scc1 L_LOOP")
    stamp(a, 7)
    a("s_nop 0")
    a(f"v_mfma_f32_32x32x16_bf16 {vr(O[1],16)}, {vr(VR+4,4)}, {vr(P+4,4)}, {vr(O[1],16)}")
    a(f"s_xor_b32 s{S_A}, s{S_W4K}, {4*4096}")
    a(f"s_add_u32 s{S_A}, s{S_A}, {L_RED}")
    a(f"v_add_u32 v4, s{S_A}, v{V_L16}")
    a(f"v_add_u32 v5, s{S_XA}, v{V_L16}")
    a("s_waitcnt lgkmcnt(0)")
    a("s_nop 7")
    for q in range(4):
        a(f"ds_write_b128 v4, {vr(O[1]+4*q,4)} offset:{q*1024}")
    a("s_waitcnt vmcnt(0) lgkmcnt(0)")
    a("s_barrier")
    for q in range(4):
        a(f"ds_read_b128 {vr(S[0]+4*q,4)}, v5 offset:{q*1024}")
    if "nop3" not in OPT:
        a(f"s_cmp_lg_u32 s{S_FB}, 0")
        a("s_cbranch_scc1 L_WO7")
        wo_read(7)
        a.label("L_WO7")
    a("s_waitcnt lgkmcnt(0)")
    for r in range(16):
        a(f"v_add_f32 v{O[0]+r}, v{O[0]+r}, v{S[0]+r}")
    a(f"v_mov_b32 v4, v{O[0]+12}")
    a(f"v_mov_b32 v5, v{O[0]+12}")
    a("s_nop 1")
    a("v_permlane32_swap_b32 v4, v5")
    a("s_nop 1")
    a(f"v_mov_b32 v6, {f32hex(2.0**40)}")
    a("v_cmp_nlt_f32 vcc, v5, v6")
    a(f"s_cmp_lg_u32 s{S_FB}, 0")
    a("s_cbranch_scc1 L_FIN")
    a("s_nop 1")
    a("s_cmp_eq_u64 vcc, 0")
    a("s_cbranch_scc1 L_NOVOTE")
    a(f"v_mov_b32 v6, {L_FB}")
    a("v_mov_b32 v7, 1")
    a("ds_write_b32 v6, v7")
    a.label("L_NOVOTE")
    a(f"v_mov_b32 v6, {L_FB}")
    a("s_waitcnt lgkmcnt(0)")
    a("s_barrier")
    a("ds_read_b32 v7, v6")
    a("s_waitcnt lgkmcnt(0)")
    a(f"v_readfirstlane_b32 s{S_A}, v7")
    a("s_nop 3")
    a(f"s_cmp_lg_u32 s{S_A}, 0")
    a("s_cbranch_scc1 L_FALLBACK")
    a.label("L_FIN")
    a("v_rcp_f32 v4, v5")
    a(f"s_lshl_b32 s{S_A}, s{S_QB}, 3")
    a(f"v_mul_f32 v4, v4, v{V_GV}")
    a(f"s_add_u32 s{S_A}, s{S_A}, s{S_T0}")
    for r in range(16):
        a(f"v_mul_f32 v{O[0]+r}, v{O[0]+r}, v4")
    for m in range(8):
        a(f"v_cvt_pk_bf16_f32 v{P+m}, v{O[0]+2*m}, v{O[0]+2*m+1}")
    a("s_mov_b32 exec_lo, 0")
    a(f"v_mov_b32 v{P+6}, 0")
    a(f"v_mov_b32 v{P+7}, 0")
    a("s_mov_b32 exec_lo, -1")
    a(f"s_lshl_b32 s{S_A}, s{S_A}, 5")
    a(f"s_add_u32 s{S_A}, s{S_A}, s{S_HH}")
    a(f"s_lshl_b32 s{S_B}, s{S_A}, 11")
    a(f"s_add_u32 s{S_B}, s{S_B}, {OF_BASE}")
    a(f"buffer_store_dwordx4 {vr(P,4)}, v{V_L16}, s[{SWS}:{SWS+3}], s{S_B} offen sc1")
    a(f"buffer_store_dwordx4 {vr(P+4,4)}, v{V_L16}, s[{SWS}:{SWS+3}], s{S_B} offen offset:1024 sc1")
    stamp(a, 8)
    if "nop3" not in OPT:
        a(f"s_lshl_b32 s{S_B}, s{S_A}, 3")
        a(f"s_add_u32 s{S_B}, s{S_B}, {F3_BASE}")
        a(f"v_mov_b32 v4, s{S_TAG}")
        a(f"v_mov_b32 v5, s{S_TAG+1}")
        a("v_mov_b32 v6, 0")
        a(f"s_lshr_b32 s{S_C}, s{S_HH}, 2")
        a(f"s_lshl_b32 s{S_A}, s{S_QB}, 3")
        a(f"s_add_u32 s{S_C}, s{S_C}, s{S_A}")
        a(f"s_lshl_b32 s{S_A}, s{S_C}, 5")
        a(f"s_lshl_b32 s{S_T}, s{S_W}, 2")
        a(f"s_add_u32 s{S_A}, s{S_A}, s{S_T}")
        a(f"s_lshl_b32 s{S_T}, s{S_A}, 3")
        a(f"s_add_u32 s{S_T}, s{S_T}, {F3_BASE}")
        a(f"v_and_b32 v7, 3, v{V_LANE}")
        a(f"v_lshl_add_u32 v{V_FP}, v7, 3, s{S_T}")
        a(f"s_lshl_b32 s{S_A}, s{S_A}, 11")
        a(f"s_add_u32 s{S_A}, s{S_A}, {OF_BASE}")
        a("s_waitcnt vmcnt(0)")
        a("s_mov_b64 exec, 1")
        a(f"buffer_store_dwordx2 v[4:5], v6, s[{SWS}:{SWS+3}], s{S_B} offen sc1")
        a("s_mov_b64 exec, -1")
        a(f"s_mov_b32 s{S_SPIN}, {SPIN_MAX}")
        a.label("L_P3")
        a(f"buffer_load_dwordx2 {vr(V_POLL,2)}, v{V_FP}, s[{SWS}:{SWS+3}], 0 offen sc1")
        a(f"s_sub_u32 s{S_SPIN}, s{S_SPIN}, 1")
        a(f"s_cmp_eq_u32 s{S_SPIN}, 0")
        a("s_cbranch_scc1 L_P3_OK")
        a("s_waitcnt vmcnt(0)")
        a(f"v_cmp_eq_u64 vcc, s[{S_TAG}:{S_TAG+1}], {vr(V_POLL,2)}")
        a("s_nop 3")
        a("s_cmp_eq_u64 vcc, -1")
        a("s_cbranch_scc0 L_P3")
        a.label("L_P3_OK")
        stamp(a, 9)
        a(f"s_lshl_b32 s{S_T}, s{S_W}, 13")
        for q in range(2):
            a(f"s_add_u32 m0, s{S_T}, {L_OB + q*4096}")
            a(f"s_add_u32 s{S_B}, s{S_A}, {q*4096}")
            for i in range(4):
                a(f"buffer_load_dwordx4 v{V_L16}, s[{SWS}:{SWS+3}], s{S_B} offen offset:{i*1024} sc1 lds")
        a(f"s_lshr_b32 s{S_B}, s{S_W}, 2")
        a(f"s_lshl_b32 s{S_T}, s{S_B}, 15")
        a(f"v_add_u32 v4, s{S_T}, v{V_L16}")
        ACC = 8
        OFR = 24
        a(f"v_and_b32 v5, 31, v{V_LANE}")
        a(f"s_lshl_b32 s{S_T}, s{S_C}, 5")
        a(f"v_add_u32 v5, s{S_T}, v5")
        a("v_mul_u32_u24 v5, 896, v5")
        a(f"v_lshrrev_b32 v6, 5, v{V_LANE}")
        a("v_lshl_add_u32 v5, v6, 3, v5")
        a(f"s_and_b32 s{S_T}, s{S_W}, 3")
        a(f"s_add_u32 s{S_A}, s{S_FT0}, s{S_T}")
        a(f"s_lshl_b32 s{S_A}, s{S_A}, 6")
        a(f"s_lshl_b32 s{S_C}, s{S_B}, 5")
        a(f"s_add_u32 s{S_A}, s{S_A}, s{S_C}")
        a(f"s_and_b32 s{S_C}, s{S_HH}, 2")
        a(f"s_add_u32 s{S_C}, s{S_C}, s{S_T}")
        a(f"s_cmp_eq_u32 s{S_C}, 5")
        a(f"s_cselect_b32 s{S_A}, {OOB}, s{S_A}")
        a(f"s_lshl_b32 s{S_T}, s{S_W}, 11")
        a(f"s_add_u32 s{S_T}, s{S_T}, {L_RED}")
        a(f"v_add_u32 v7, s{S_T}, v{V_L16}")
        a(f"s_xor_b32 s{S_T}, s{S_W}, 4")
        a(f"s_lshl_b32 s{S_T}, s{S_T}, 11")
        a(f"s_add_u32 s{S_T}, s{S_T}, {L_RED}")
        a(f"v_add_u32 v6, s{S_T}, v{V_L16}")
        a("s_waitcnt vmcnt(0)")
        a("s_barrier")
        stamp(a, 10)
        lg3 = Cnt()
        def rd(i):
            a(f"ds_read_b128 {vr(OFR + 4*(i%16), 4)}, v4 offset:{L_OB + i*1024}")
            lg3.issue(i)
        for i in range(12):
            rd(i)
        for i in range(32):
            if i + 12 < 32:
                rd(i + 12)
            n = lg3.need(i)
            a(f"s_waitcnt lgkmcnt({n})")
            c = "0" if i == 0 else vr(ACC, 16)
            a(f"v_mfma_f32_32x32x16_bf16 {vr(ACC,16)}, {ar(4*i,4)}, {vr(OFR + 4*(i%16), 4)}, {c}")
        a(f"s_cmp_ge_u32 s{S_W}, 4")
        a("s_nop 10")
        a("s_cbranch_scc1 L_KH1")
        for kh in range(2):
            keep, send = (ACC, ACC + 8) if kh == 0 else (ACC + 8, ACC)
            if kh == 1:
                a.label("L_KH1")
            a(f"ds_write_b128 v6, {vr(send,4)}")
            a(f"ds_write_b128 v6, {vr(send+4,4)} offset:1024")
            a("s_waitcnt lgkmcnt(0)")
            a("s_barrier")
            a(f"ds_read_b128 {vr(24,4)}, v7")
            a(f"ds_read_b128 {vr(28,4)}, v7 offset:1024")
            a("s_waitcnt lgkmcnt(0)")
            for r in range(8):
                a(f"v_add_f32 v{24+r}, v{24+r}, v{keep+r}")
            if kh == 0:
                a("s_branch L_STORE")
        a.label("L_STORE")
        for m in range(4):
            a(f"v_cvt_pk_bf16_f32 v{32+m}, v{24+2*m}, v{24+2*m+1}")
        a(f"buffer_store_dwordx2 v[32:33], v5, s[{SOUT}:{SOUT+3}], s{S_A} offen")
        a(f"buffer_store_dwordx2 v[34:35], v5, s[{SOUT}:{SOUT+3}], s{S_A} offen offset:16")
    stamp_flush(a, 11 if "nop3" not in OPT else 9, S_W)
    a.label("L_END")
    a("s_endpgm")

    if "nop3" not in OPT:
        for c in range(7):
            a.label(f"L_WOR{c}")
            wo_read(c)
            a("s_waitcnt lgkmcnt(0)")
            a("s_branch L_WOBL")

    a.label("L_FALLBACK")
    a(f"s_mov_b32 s{S_FB}, 1")
    a("s_mov_b32 exec_lo, 0")
    for t in range(2):
        a(f"v_mov_b32 v{Q[t]+6}, 0")
        a(f"v_mov_b32 v{Q[t]+7}, 0")
    a("s_mov_b32 exec_lo, -1")
    a("v_mov_b32 v4, 0xff800000")
    a("v_mov_b32 v5, 0xff800000")
    a(f"s_mov_b32 s{S_A}, 0")
    a.label("L_FBMAX")
    a(f"buffer_load_dwordx4 {vr(KR,4)}, v{V_L16}, s[{SKV}:{SKV+3}], s{S_A} offen sc1")
    a(f"buffer_load_dwordx4 {vr(KR+4,4)}, v{V_L16}, s[{SKV}:{SKV+3}], s{S_A} offen offset:1024 sc1")
    a("s_waitcnt vmcnt(0)")
    for t in range(2):
        a(f"v_mfma_f32_32x32x16_bf16 {vr(S[t],16)}, {vr(KR,4)}, {vr(Q[t],4)}, 0")
        a(f"v_mfma_f32_32x32x16_bf16 {vr(S[t],16)}, {vr(KR+4,4)}, {vr(Q[t]+4,4)}, {vr(S[t],16)}")
    a("s_nop 15")
    for t in range(2):
        for r in range(0, 16, 2):
            a(f"v_max3_f32 v{4+t}, v{4+t}, v{S[t]+r}, v{S[t]+r+1}")
    a(f"s_add_u32 s{S_A}, s{S_A}, 4096")
    a(f"s_cmp_lt_u32 s{S_A}, 262144")
    a("s_cbranch_scc1 L_FBMAX")
    a(f"s_mov_b32 s{S_CUR}, {L_RING[0]}")
    a(f"s_mov_b32 s{S_NXT}, {L_RING[1]}")
    a(f"s_mov_b32 s{S_C}, 0")
    kv_dma_setup(None, S_CUR)
    a(f"s_mov_b32 s{S_C}, 1")
    kv_dma_setup(None, S_NXT)
    a("s_waitcnt vmcnt(4)")
    a("s_barrier")
    a("s_branch L_SETM")

    nsg = 102 if STAMP else 78
    return a.text() + f"""
.section .rodata,"a"
.p2align 6
.amdhsa_kernel {KNAME}
  .amdhsa_next_free_vgpr 256
  .amdhsa_next_free_sgpr {nsg}
  .amdhsa_accum_offset 128
  .amdhsa_group_segment_fixed_size 0
  .amdhsa_kernarg_size 80
  .amdhsa_user_sgpr_count 2
  .amdhsa_user_sgpr_kernarg_segment_ptr 1
  .amdhsa_system_sgpr_workgroup_id_x 1
.end_amdhsa_kernel
"""

def main():
    global STAMP
    if len(sys.argv) > 2 and sys.argv[2] == "stamp": STAMP = True
    OPT.update(sys.argv[3:])
    hdr = open("cdna_kernels/" + NAME + ".s.ref").read().split("\n")
    top = [l for l in hdr if l.startswith(";") and "@launch" not in l and "Override" not in l and "grid=ceil" not in l]
    out = "\n".join(top[:11]) + "\n"
    out += f"; @launch grid=(256,1,1) block=(512,1,1) lds={LDS_BYTES}\n"
    out += '.amdgcn_target "amdgcn-amd-amdhsa--gfx950"\n'
    out += gen()
    path = sys.argv[1] if len(sys.argv) > 1 else "cdna_kernels/" + NAME + ".s"
    open(path, "w").write(out)

if __name__ == "__main__":
    main()
```

```python
import struct, sys, math

NAME = "gated_mix__softmax_full_mha__softmax_full_mha__prompt"
KNAME = NAME + "_kernel"

def f32hex(x):
    return "0x%08x" % struct.unpack("<I", struct.pack("<f", x))[0]

class Asm:
    def __init__(self):
        self.lines = []
    def __call__(self, s):
        for ln in s.strip("\n").split("\n"):
            self.lines.append("    " + ln.strip())
    def label(self, l):
        self.lines.append(l + ":")
    def raw(self, s):
        self.lines.append(s)
    def text(self):
        return "\n".join(self.lines) + "\n"

class Cnt:
    def __init__(self):
        self.q = []
    def issue(self, tag, n=1):
        for _ in range(n):
            self.q.append(tag)
    def need(self, *tags):
        idx = -1
        for i, t in enumerate(self.q):
            if t in tags:
                idx = i
        if idx < 0:
            return None
        n = len(self.q) - 1 - idx
        self.q = self.q[idx + 1:]
        return n
    def clear(self):
        self.q = []

def vr(lo, n):
    return f"v[{lo}:{lo+n-1}]"
def ar(lo, n):
    return f"a[{lo}:{lo+n-1}]"

KV_BASE = 0
OF_BASE = 8 << 20
F2_BASE = 12 << 20
F3_BASE = (12 << 20) + (64 << 10)
WS_SIZE = 13 << 20
X_BYTES = 2048 * 448 * 2
W_BYTES = 448 * 1344 * 2
WO_BYTES = 448 * 448 * 2
OUT_BYTES = 2048 * 448 * 2
OOB = 0x40000000
QSCALE = math.log2(math.e) / math.sqrt(28.0)
SPIN_MAX = 200000

L_W = 0
L_XB = 86016
L_XA = 126976
L_RING = [L_XA, 0, 32768]
L_WO = 65536
L_R3 = 0
L_RED = L_XA
L_FB = L_XA + 32768
L_GV = L_FB + 64
LDS_BYTES = L_GV + 128

STAMP = False
OPT = set()
STAMP_BASE = 64 << 20
STR = [78 + 2*i for i in range(12)] + [36, 38, 40, 42]
def pstamp(a, i):
    if STAMP and "pst" in OPT:
        a(f"s_memtime s[{STR[i]}:{STR[i]+1}]")
def stamp(a, i, real=False):
    if not STAMP: return
    if "pst" in OPT and i >= 2: return
    a(f"{'s_memrealtime' if real else 's_memtime'} s[{STR[i]}:{STR[i]+1}]")
def stamp_flush(a, n, s_w):
    if not STAMP: return
    a("s_waitcnt vmcnt(0) lgkmcnt(0)")
    a(f"s_memtime s[{STR[n]}:{STR[n]+1}]")
    a(f"s_memrealtime s[{STR[n+1]}:{STR[n+1]+1}]")
    a("s_waitcnt lgkmcnt(0)")
    a("s_mov_b32 s14, 0x10000000")
    a("s_lshl_b32 s59, s2, 3")
    a(f"s_add_u32 s59, s59, s{s_w}")
    a("s_lshl_b32 s59, s59, 7")
    a(f"s_add_u32 s59, s59, {STAMP_BASE}")
    a("v_mov_b32 v1, 0")
    a("s_mov_b64 exec, 1")
    a("s_getreg_b32 s60, hwreg(HW_REG_XCC_ID)")
    a("v_mov_b32 v2, s60")
    a("v_mov_b32 v3, 0")
    a("buffer_store_dwordx2 v[2:3], v1, s[12:15], s59 offen offset:120")
    for i in range(n + 2):
        a(f"v_mov_b32 v2, s{STR[i]}")
        a(f"v_mov_b32 v3, s{STR[i]+1}")
        a(f"buffer_store_dwordx2 v[2:3], v1, s[12:15], s59 offen offset:{8*i}")
        a("s_nop 1")

def srd(a, d, lo, hi, nbytes):
    a(f"s_mov_b32 s{d}, s{lo}")
    a(f"s_mov_b32 s{d+1}, s{hi}")
    a(f"s_mov_b32 s{d+2}, {nbytes}")
    a(f"s_mov_b32 s{d+3}, 0x00020000")

def gen():
    a = Asm()
    a.raw(".text")
    a.raw(f".globl {KNAME}")
    a.raw(".p2align 8")
    a.raw(f".type {KNAME},@function")
    a.label(KNAME)
    SX, SW, SWS, SWO, SG, SKV, SOUT, SDBG = 4, 8, 12, 16, 20, 24, 28, 32
    S_HH, S_QB, S_W, S_T, S_TT, S_R = 56, 57, 58, 59, 60, 61
    S_A, S_B, S_C = 62, 63, 64
    S_XA, S_XB = 65, 66
    S_TAG = 68
    S_RDY = 70
    S_ST, S_CUR, S_NXT, S_PRV = 71, 72, 73, 74
    S_SPIN = 75
    S_W4K = 76
    S_FB = 77
    V_LANE, V_L16 = 2, 3
    a("s_cmp_ge_u32 s2, 256")
    a("s_cbranch_scc1 L_END")
    stamp(a, 0); stamp(a, 1, True)
    a("s_load_dwordx16 s[36:51], s[0:1], 0")
    a("s_load_dwordx4 s[52:55], s[0:1], 64")
    a(f"s_memrealtime s[{S_TAG}:{S_TAG+1}]")
    LH = 3 if "map2" in OPT else 2 if "map1" in OPT else 5 if "map4" in OPT else 4
    a(f"s_and_b32 s{S_T}, s2, 7")
    a(f"s_lshr_b32 s{S_A}, s2, 3")
    a(f"s_and_b32 s{S_HH}, s{S_T}, {(32 >> LH) - 1}")
    a(f"s_lshl_b32 s{S_HH}, s{S_HH}, {LH}")
    a(f"s_and_b32 s{S_B}, s{S_A}, {(1 << LH) - 1}")
    a(f"s_add_u32 s{S_HH}, s{S_HH}, s{S_B}")
    a(f"s_lshr_b32 s{S_QB}, s{S_T}, {5 - LH}")
    a(f"s_lshl_b32 s{S_QB}, s{S_QB}, {5 - LH}")
    a(f"s_lshr_b32 s{S_A}, s{S_A}, {LH}")
    a(f"s_add_u32 s{S_QB}, s{S_QB}, s{S_A}")
    if LH == 2:
        a(f"s_lshl_b32 s{S_B}, s{S_B}, 1")
    else:
        a(f"s_and_b32 s{S_B}, s{S_B}, 7")
        a(f"s_lshl_b32 s{S_A}, s{S_A}, 1")
    a(f"s_add_u32 s{S_R}, s{S_A}, s{S_B}")
    a(f"s_add_u32 s{S_R}, s{S_R}, s{S_T}")
    a(f"s_mul_i32 s{S_A}, s{S_R}, 37")
    a(f"s_lshr_b32 s{S_A}, s{S_A}, 8")
    a(f"s_mul_i32 s{S_A}, s{S_A}, 7")
    a(f"s_sub_u32 s{S_R}, s{S_R}, s{S_A}")
    if "norot" in OPT: a(f"s_mov_b32 s{S_R}, 0")
    a("v_lshrrev_b32 v1, 6, v0")
    a(f"v_and_b32 v{V_LANE}, 63, v0")
    a(f"v_readfirstlane_b32 s{S_W}, v1")
    a(f"v_lshlrev_b32 v{V_L16}, 4, v{V_LANE}")
    a(f"s_lshl_b32 s{S_TT}, s{S_QB}, 3")
    a("s_nop 2")
    a(f"s_add_u32 s{S_TT}, s{S_TT}, s{S_W}")
    a(f"s_lshl_b32 s{S_W4K}, s{S_W}, 12")
    a(f"s_add_u32 s{S_XA}, s{S_W4K}, {L_XA}")
    a(f"s_add_u32 s{S_XB}, s{S_W4K}, {L_XB}")

    ACCQ, ACCK, ACCV = 16, 32, 48
    XF = 64
    V_XD, V_XR, V_WD, V_WR = 96, 100, 104, 105
    V_CUR, V_NXT, V_DM, V_FP, V_WOD, V_WOR, V_TAGV, V_KP, V_QR0, V_QR1, V_POLL = 112, 113, 114, 115, 116, 117, 118, 120, 121, 122, 124
    a(f"v_lshrrev_b32 v4, 3, v{V_LANE}")
    a(f"v_and_b32 v5, 7, v{V_LANE}")
    a(f"s_lshl_b32 s{S_T}, s{S_TT}, 5")
    a(f"v_add_u32 v6, s{S_T}, v4")
    a("v_mul_u32_u24 v6, 896, v6")
    a("v_lshrrev_b32 v7, 1, v4")
    a("v_xor_b32 v8, v7, v5")
    a("v_or_b32 v7, 4, v7")
    a("v_xor_b32 v7, v7, v5")
    a(f"v_lshl_add_u32 v{V_XD}, v8, 4, v6")
    a("v_lshl_add_u32 v7, v7, 4, v6")
    a(f"v_add_u32 v{V_XD+1}, {8*896 - 1024}, v7")
    a(f"v_add_u32 v{V_XD+2}, {16*896 - 2048}, v{V_XD}")
    a(f"v_add_u32 v{V_XD+3}, {24*896 - 3072}, v7")
    a(f"v_mul_u32_u24 v5, 43, v{V_LANE}")
    a("v_lshrrev_b32 v5, 9, v5")
    a("v_mul_u32_u24 v6, 12, v5")
    a(f"v_sub_u32 v6, v{V_LANE}, v6")
    a("v_lshl_add_u32 v5, v1, 3, v5")
    a("v_mul_u32_u24 v5, 2688, v5")
    a("v_lshrrev_b32 v7, 2, v6")
    a("v_mul_u32_u24 v7, 896, v7")
    a("v_add_u32 v5, v5, v7")
    a("v_and_b32 v6, 3, v6")
    a("v_lshl_add_u32 v5, v6, 4, v5")
    a(f"s_and_b32 s{S_T}, s{S_HH}, 15")
    a(f"s_mul_i32 s{S_T}, s{S_T}, 56")
    a(f"v_add_u32 v{V_WD}, s{S_T}, v5")
    S_W768 = 67
    a(f"s_mul_i32 s{S_W768}, s{S_W}, 1536")
    pstamp(a, 2)
    a("s_waitcnt lgkmcnt(0)")
    pstamp(a, 3)
    srd(a, SX, 36, 37, X_BYTES)
    a(f"s_cmp_ge_u32 s{S_HH}, 16")
    a(f"s_cselect_b32 s{SW}, s44, s38")
    a(f"s_cselect_b32 s{SW+1}, s45, s39")
    a(f"s_mov_b32 s{SW+2}, {W_BYTES}")
    a(f"s_mov_b32 s{SW+3}, 0x00020000")

    vm = Cnt()
    lg = Cnt()
    def wait_vm(*tags):
        n = vm.need(*tags)
        if n is not None:
            a(f"s_waitcnt vmcnt({n})")
    def wait_lg(*tags):
        n = lg.need(*tags)
        if n is not None:
            a(f"s_waitcnt lgkmcnt({min(n, 15)})")
    def chunk_of(s):
        a(f"s_add_u32 s{S_A}, s{S_R}, {s}")
        a(f"s_sub_u32 s{S_B}, s{S_A}, 7")
        a(f"s_min_u32 s{S_A}, s{S_A}, s{S_B}")
    def dma_x(s):
        chunk_of(s)
        base = S_XA if (s & 1) == 0 else S_XB
        a(f"s_mov_b32 m0, s{base}")
        a(f"s_lshl_b32 s{S_B}, s{S_A}, 7")
        for i in range(4):
            a(f"buffer_load_dwordx4 v{V_XD+i}, s[{SX}:{SX+3}], s{S_B} offen offset:{i*1024} lds")
            vm.issue(f"X{s}")
    def dma_w(s):
        chunk_of(s)
        a("s_mov_b32 exec_hi, 0xffff")
        a(f"s_mul_i32 s{S_A}, s{S_A}, {64*2688}")
        a(f"s_add_u32 m0, s{S_W768}, {64*s*192}")
        a(f"s_add_u32 s{S_B}, s{S_A}, {4*2688 - 768}")
        a(f"buffer_load_dwordx4 v{V_WD}, s[{SW}:{SW+3}], s{S_A} offen lds")
        a(f"buffer_load_dwordx4 v{V_WD}, s[{SW}:{SW+3}], s{S_B} offen offset:768 lds")
        vm.issue(f"W{s}", 2)
        a("s_mov_b32 exec_hi, -1")

    dma_x(0)
    dma_w(0)
    pstamp(a, 4)
    dma_x(1)
    dma_w(1)
    pstamp(a, 5)
    srd(a, SG, 48, 49, 896)
    srd(a, SWS, 54, 55, WS_SIZE)
    srd(a, SOUT, 50, 51, OUT_BYTES)
    srd(a, SDBG, 52, 53, 256)
    a(f"s_cmp_ge_u32 s{S_W}, 4")
    a(f"s_cselect_b32 s{SWO}, s46, s40")
    a(f"s_cselect_b32 s{SWO+1}, s47, s41")
    a(f"s_sub_u32 s{SWO}, s{SWO}, 4096")
    a(f"s_subb_u32 s{SWO+1}, s{SWO+1}, 0")
    a(f"s_mov_b32 s{SWO+2}, {WO_BYTES + 4096}")
    a(f"s_mov_b32 s{SWO+3}, 0x00020000")
    a(f"s_lshl_b32 s{S_T}, s{S_HH}, 18")
    a(f"s_add_u32 s{SKV}, s54, s{S_T}")
    a(f"s_addc_u32 s{SKV+1}, s55, 0")
    a(f"s_mov_b32 s{SKV+2}, 262144")
    a(f"s_mov_b32 s{SKV+3}, 0x00020000")
    a(f"s_or_b32 s{S_TAG}, s{S_TAG}, 1")
    a(f"s_or_b32 s{S_T}, s2, s{S_W}")
    a(f"s_cmp_lg_u32 s{S_T}, 0")
    a("s_cbranch_scc1 L_NOTAG")
    a(f"v_mov_b32 v4, s{S_TAG}")
    a(f"v_mov_b32 v5, s{S_TAG+1}")
    a("v_mov_b32 v6, 0")
    a("s_mov_b64 exec, 1")
    a(f"buffer_store_dwordx2 v[4:5], v6, s[{SDBG}:{SDBG+3}], 0 offen sc1")
    a("s_mov_b64 exec, -1")
    a.label("L_NOTAG")
    if "notlb" not in OPT:
        a(f"s_cmp_lg_u32 s{S_W}, 7")
        a("s_cbranch_scc1 L_NOTOUCH")
        a("v_mov_b32 v6, 0")
        a(f"s_lshl_b32 s{S_T}, s{S_TT}, 12")
        a("s_mov_b64 exec, 1")
        a(f"buffer_load_dword v14, v6, s[{SKV}:{SKV+3}], s{S_T} offen")
        a(f"s_lshl_b32 s{S_T}, s{S_QB}, 8")
        a(f"s_add_u32 s{S_T}, s{S_T}, s{S_HH}")
        a(f"s_lshl_b32 s{S_T}, s{S_T}, 11")
        a(f"s_add_u32 s{S_T}, s{S_T}, {OF_BASE}")
        a(f"buffer_load_dword v9, v6, s[{SWS}:{SWS+3}], s{S_T} offen")
        a(f"s_mov_b32 s{S_T}, {F3_BASE + 32768}")
        a(f"buffer_load_dword v10, v6, s[{SWS}:{SWS+3}], s{S_T} offen")
        a(f"s_mul_i32 s{S_T}, s{S_QB}, {256*896}")
        a(f"buffer_load_dword v11, v6, s[{SOUT}:{SOUT+3}], s{S_T} offen")
        a(f"s_movk_i32 s{S_T}, 4096")
        a(f"buffer_load_dword v12, v6, s[{SWO}:{SWO+3}], s{S_T} offen")
        a(f"buffer_load_dword v13, v6, s[{SG}:{SG+3}], 0 offen")
        a("s_mov_b64 exec, -1")
        a.label("L_NOTOUCH")
    a(f"v_and_b32 v4, 31, v{V_LANE}")
    a(f"v_lshrrev_b32 v5, 5, v{V_LANE}")
    a("v_lshrrev_b32 v6, 1, v4")
    a("v_and_b32 v6, 7, v6")
    a("v_lshlrev_b32 v7, 7, v4")
    a(f"v_add_u32 v7, s{S_XB}, v7")
    for j in range(4):
        a(f"v_add_u32 v8, {2*j}, v5")
        a("v_xor_b32 v8, v8, v6")
        a(f"v_lshl_add_u32 v{V_XR+j}, v8, 4, v7")
    a(f"v_bfe_u32 v6, v{V_LANE}, 2, 2")
    a("v_lshl_add_u32 v6, v5, 3, v6")
    a("v_mul_u32_u24 v6, 192, v6")
    a(f"v_bfe_u32 v7, v{V_LANE}, 4, 1")
    a("v_lshl_add_u32 v6, v7, 5, v6")
    a(f"v_and_b32 v7, 3, v{V_LANE}")
    a(f"v_lshl_add_u32 v{V_WR}, v7, 3, v6")
    a(f"v_add_u32 v{V_WR+1}, {14*3072}, v{V_WR}")
    S_T0, S_FT0, S_WOM, S_WOG, S_WOX, S_KPS = 44, 3, 45, 46, 47, 48
    a(f"s_and_b32 s{S_A}, s{S_W}, 3")
    a(f"s_lshr_b32 s{S_B}, s{S_W}, 2")
    a(f"s_mov_b32 s{S_KPS}, s{S_B}")
    a(f"s_lshl_b32 s{S_T}, s{S_A}, 1")
    a(f"s_add_u32 s{S_T0}, s{S_T}, s{S_B}")
    a(f"s_lshl_b32 s{S_T}, s{S_T0}, 12")
    a(f"s_add_u32 s{S_T}, s{S_T}, {L_XB}")
    a(f"v_add_u32 v{V_QR0}, s{S_T}, v{V_L16}")
    a(f"s_xor_b32 s{S_T}, s{S_T0}, 1")
    a(f"s_lshl_b32 s{S_T}, s{S_T}, 12")
    a(f"s_add_u32 s{S_T}, s{S_T}, {L_XB}")
    a(f"v_add_u32 v{V_QR1}, s{S_T}, v{V_L16}")
    a(f"s_lshl_b32 s{S_T}, s{S_B}, 12")
    a(f"v_add_u32 v{V_KP}, s{S_T}, v{V_L16}")
    a(f"v_add_u32 v{V_DM}, s{S_W4K}, v{V_L16}")
    a(f"s_lshl_b32 s{S_T}, s{S_HH}, 3")
    a(f"s_add_u32 s{S_T}, s{S_T}, s{S_W}")
    a(f"s_lshl_b32 s{S_T}, s{S_T}, 6")
    a(f"s_add_u32 s{S_T}, s{S_T}, {F2_BASE}")
    a(f"v_add_u32 v5, s{S_QB}, v{V_LANE}")
    a("v_and_b32 v5, 7, v5")
    a(f"v_lshl_add_u32 v{V_FP}, v5, 3, s{S_T}")
    a(f"s_mov_b32 s{S_FB}, 0")
    a(f"s_mov_b32 s{S_RDY}, 1")
    a(f"s_and_b32 s{S_T}, s{S_HH}, 3")
    a(f"s_lshl_b32 s{S_FT0}, s{S_T}, 2")
    a(f"s_cmp_eq_u32 s{S_T}, 3")
    a(f"s_cselect_b32 s{S_FT0}, 11, s{S_FT0}")
    a(f"v_lshrrev_b32 v4, 4, v{V_LANE}")
    a(f"v_mul_u32_u24 v5, {4*896}, v4")
    a(f"v_and_b32 v6, 15, v{V_LANE}")
    a("v_lshl_add_u32 v5, v6, 4, v5")
    a(f"s_lshl_b32 s{S_T}, s{S_FT0}, 6")
    a(f"v_add_u32 v{V_WOD}, s{S_T}, v5")
    a(f"s_mul_i32 s{S_WOM}, s{S_W}, 4352")
    a(f"s_add_u32 s{S_WOM}, s{S_WOM}, {L_WO}")
    a(f"v_bfe_u32 v4, v{V_LANE}, 2, 2")
    a("v_mul_u32_u24 v4, 1088, v4")
    a(f"v_lshrrev_b32 v5, 5, v{V_LANE}")
    a("v_lshl_add_u32 v4, v5, 8, v4")
    a(f"v_bfe_u32 v6, v{V_LANE}, 4, 1")
    a("v_lshl_add_u32 v4, v6, 5, v4")
    a(f"v_and_b32 v6, 3, v{V_LANE}")
    a("v_lshl_add_u32 v4, v6, 3, v4")
    a(f"v_add_u32 v{V_WOR}, s{S_WOM}, v4")
    a(f"s_mul_i32 s{S_WOG}, s{S_A}, {4*28*896}")
    a(f"s_add_u32 s{S_WOG}, s{S_WOG}, 4096")
    a(f"s_mov_b32 s{S_WOX}, {16*896}")
    a(f"v_mov_b32 v6, {L_FB}")
    a("v_mov_b32 v7, 0")
    a("ds_write_b32 v6, v7")
    for r in range(16, 64):
        a(f"v_mov_b32 v{r}, 0")

    def read_x(s):
        off = (L_XA - L_XB) if (s & 1) == 0 else 0
        for j in range(4):
            a(f"ds_read_b128 {vr(XF + (s&1)*16 + 4*j, 4)}, v{V_XR+j} offset:{off}")
            lg.issue(f"XR{s}")
    def read_w(ks):
        base = V_WR if ks < 14 else V_WR + 1
        off = (ks % 14) * 3072
        st = ks & 1
        for seg in (1, 2, 0):
            d = st * 12 + seg * 4
            a(f"ds_read_b64_tr_b16 {ar(d,2)}, v{base} offset:{off + seg*64}")
            a(f"ds_read_b64_tr_b16 {ar(d+2,2)}, v{base} offset:{off + seg*64 + 768}")
            lg.issue(f"WR{ks}", 2)

    stamp(a, 2)
    pstamp(a, 6)
    wait_vm("X0")
    read_x(0)
    wait_vm("W0")
    pstamp(a, 7)
    a("s_barrier")
    pstamp(a, 8)
    stamp(a, 3)
    read_w(0)
    wait_lg("XR0")
    dma_x(2)
    dma_w(2)
    pstamp(a, 9)
    for ks in range(28):
        s, j = divmod(ks, 4)
        if j == 2 and s + 1 < 7:
            wait_vm(f"X{s+1}")
            read_x(s + 1)
        if j == 3 and s + 1 < 7:
            wait_vm(f"W{s+1}")
            a("s_barrier")
        if ks + 1 < 28:
            read_w(ks + 1)
        wait_lg(f"WR{ks}", f"XR{s}")
        st = ks & 1
        x = vr(XF + (s & 1) * 16 + 4 * j, 4)
        w = lambda seg: ar(st * 12 + seg * 4, 4)
        a(f"v_mfma_f32_32x32x16_bf16 {vr(ACCK,16)}, {w(1)}, {x}, {vr(ACCK,16)}")
        a(f"v_mfma_f32_32x32x16_bf16 {vr(ACCV,16)}, {x}, {w(2)}, {vr(ACCV,16)}")
        a(f"v_mfma_f32_32x32x16_bf16 {vr(ACCQ,16)}, {w(0)}, {x}, {vr(ACCQ,16)}")
        if j == 3 and s + 3 < 7:
            wait_lg(f"XR{s+1}")
            dma_x(s + 3)
            dma_w(s + 3)
        if ks == 20:
            a("v_mov_b32 v4, 0")
            a(f"buffer_load_dwordx2 {vr(V_TAGV,2)}, v4, s[{SDBG}:{SDBG+3}], 0 offen sc1")
            vm.issue("TAG")
    stamp(a, 4)
    pstamp(a, 10)
    PK = 64
    a(f"s_lshl_b32 s{S_A}, s{S_TT}, 12")
    a(f"v_add_u32 v4, s{S_XA}, v{V_L16}")
    a(f"v_add_u32 v5, s{S_XB}, v{V_L16}")
    a(f"s_mov_b32 s{S_B}, {f32hex(QSCALE)}")
    a("s_nop 5")
    for m in range(8):
        a(f"v_cvt_pk_bf16_f32 v{PK+m}, v{ACCK+2*m}, v{ACCK+2*m+1}")
    a("s_mov_b32 exec_lo, 0")
    a(f"v_mov_b32 v{PK+6}, 0x3f803f80")
    a(f"v_mov_b32 v{PK+7}, 0x00003f80")
    a("s_mov_b32 exec_lo, -1")
    for m in range(2):
        a(f"buffer_store_dwordx4 {vr(PK+4*m,4)}, v{V_L16}, s[{SKV}:{SKV+3}], s{S_A} offen offset:{1024*m} sc1")
    for m in range(8):
        a(f"v_cvt_pk_bf16_f32 v{PK+8+m}, v{ACCV+2*m}, v{ACCV+2*m+1}")
    a("s_mov_b32 exec_lo, 0x10000000")
    a("s_mov_b32 exec_hi, 0x10000000")
    for m in range(8):
        a(f"v_mov_b32 v{PK+8+m}, 0x3f803f80")
    a("s_mov_b64 exec, -1")
    for m in range(2, 4):
        a(f"buffer_store_dwordx4 {vr(PK+4*m,4)}, v{V_L16}, s[{SKV}:{SKV+3}], s{S_A} offen offset:{1024*m} sc1")
    for m in range(2):
        a(f"ds_write_b128 v4, {vr(PK+4*m,4)} offset:{1024*m}")
    for r in range(16):
        a(f"v_mul_f32 v{ACCQ+r}, s{S_B}, v{ACCQ+r}")
    for m in range(8):
        a(f"v_cvt_pk_bf16_f32 v{PK+16+m}, v{ACCQ+2*m}, v{ACCQ+2*m+1}")
    a("s_mov_b32 exec_lo, 0")
    a(f"v_mov_b32 v{PK+16+6}, 0")
    a(f"v_mov_b32 v{PK+16+7}, 0")
    a("s_mov_b32 exec_lo, -1")
    a(f"ds_write_b128 v5, {vr(PK+16,4)}")
    a(f"ds_write_b128 v5, {vr(PK+20,4)} offset:1024")
    for m in range(2, 4):
        a(f"ds_write_b128 v4, {vr(PK+4*m,4)} offset:{1024*m}")
    a(f"v_add_u32 v4, {L_RING[0]}, v{V_L16}")
    a("s_waitcnt lgkmcnt(0)")
    a("s_barrier")
    lg.clear()

    Q = [8, 16]
    S = [24, 40]
    O = [56, 72]
    P = 88
    KR, VR = 96, 104
    a(f"ds_read_b128 {vr(KR,4)}, v4")
    a(f"ds_read_b128 {vr(Q[0],4)}, v{V_QR0}")
    a(f"ds_read_b128 {vr(Q[1],4)}, v{V_QR1}")
    a(f"ds_read_b128 {vr(KR+4,4)}, v4 offset:1024")
    a(f"ds_read_b128 {vr(Q[0]+4,4)}, v{V_QR0} offset:1024")
    a(f"ds_read_b128 {vr(Q[1]+4,4)}, v{V_QR1} offset:1024")
    a("s_waitcnt lgkmcnt(3)")
    for t in range(2):
        a(f"v_mfma_f32_32x32x16_bf16 {vr(S[t],16)}, {vr(KR,4)}, {vr(Q[t],4)}, 0")
    a("s_waitcnt lgkmcnt(0)")
    for t in range(2):
        a(f"v_mfma_f32_32x32x16_bf16 {vr(S[t],16)}, {vr(KR+4,4)}, {vr(Q[t]+4,4)}, {vr(S[t],16)}")
    a("s_barrier")
    a("s_waitcnt vmcnt(0)")
    a(f"s_mov_b32 s{S_SPIN}, {SPIN_MAX}")
    a.label("L_TAG")
    a(f"v_readfirstlane_b32 s{S_TAG}, v{V_TAGV}")
    a(f"v_readfirstlane_b32 s{S_TAG+1}, v{V_TAGV+1}")
    a(f"s_sub_u32 s{S_SPIN}, s{S_SPIN}, 1")
    a(f"s_cmp_eq_u32 s{S_SPIN}, 0")
    a("s_cbranch_scc1 L_TAG_OK")
    a(f"s_cmp_lg_u32 s{S_TAG}, 0")
    a("s_cbranch_scc1 L_TAG_OK")
    a("v_mov_b32 v4, 0")
    a(f"buffer_load_dwordx2 {vr(V_TAGV,2)}, v4, s[{SDBG}:{SDBG+3}], 0 offen sc1")
    a("s_waitcnt vmcnt(0)")
    a("s_branch L_TAG")
    a.label("L_TAG_OK")
    a("s_mov_b64 exec, 1")
    a(f"buffer_store_dwordx2 {vr(V_TAGV,2)}, v{V_FP}, s[{SWS}:{SWS+3}], 0 offen sc1")
    a("s_mov_b64 exec, -1")
    if "nop3" not in OPT:
        a(f"s_mov_b32 m0, s{S_WOM}")
        for q in range(4):
            a(f"s_sub_u32 s{S_T}, s{S_WOG}, {q*192}")
            a(f"buffer_load_dwordx4 v{V_WOD}, s[{SWO}:{SWO+3}], s{S_T} offen offset:{q*1088} lds")
        a(f"s_add_u32 s{S_WOG}, s{S_WOG}, s{S_WOX}")
        a(f"s_xor_b32 s{S_WOX}, s{S_WOX}, {(16*896) ^ (12*896)}")
    a("s_nop 3")
    for t in range(2):
        m = 4 + t
        a(f"v_max3_f32 v{m}, v{S[t]}, v{S[t]+1}, v{S[t]+2}")
        for r in range(3, 15, 2):
            a(f"v_max3_f32 v{m}, v{m}, v{S[t]+r}, v{S[t]+r+1}")
        a(f"v_max_f32 v{m}, v{m}, v{S[t]+15}")
    a.label("L_SETM")
    a(f"v_add_u32 v{V_CUR}, {L_RING[0]}, v{V_KP}")
    a(f"v_add_u32 v{V_NXT}, {L_RING[1]}, v{V_KP}")
    a("v_mov_b32 v6, v4")
    a("v_mov_b32 v7, v5")
    a(f"ds_read_b128 {vr(KR,4)}, v{V_CUR}")
    a(f"ds_read_b128 {vr(KR+4,4)}, v{V_CUR} offset:1024")
    a(f"ds_read_b128 {vr(VR,4)}, v{V_CUR} offset:2048")
    a("v_permlane32_swap_b32 v4, v6")
    a("v_permlane32_swap_b32 v5, v7")
    a(f"s_mov_b32 s{S_ST}, 0")
    a(f"s_mov_b32 s{S_CUR}, {L_RING[0]}")
    a(f"s_mov_b32 s{S_NXT}, {L_RING[1]}")
    a(f"s_mov_b32 s{S_PRV}, {L_RING[2]}")
    a("v_max_f32 v4, v4, v6")
    a("v_max_f32 v5, v5, v7")
    for t in range(2):
        m = 4 + t
        a(f"v_sub_f32 v{m}, 0, v{m}")
        a(f"v_and_b32 v6, 0xffff0000, v{m}")
        a(f"v_sub_f32 v{m}, v{m}, v6")
        a(f"v_and_b32 v7, 0xffff0000, v{m}")
        a(f"v_sub_f32 v{m}, v{m}, v7")
        a("v_lshrrev_b32 v6, 16, v6")
        a("s_mov_b32 exec_lo, 0")
        a(f"v_or_b32 v{Q[t]+6}, v6, v7")
        a(f"v_lshrrev_b32 v{Q[t]+7}, 16, v{m}")
        a("s_mov_b32 exec_lo, -1")
    a("s_waitcnt lgkmcnt(0)")
    a(f"v_mfma_f32_32x32x16_bf16 {vr(S[0],16)}, {vr(KR,4)}, {vr(Q[0],4)}, 0")
    a(f"v_mfma_f32_32x32x16_bf16 {vr(S[0],16)}, {vr(KR+4,4)}, {vr(Q[0]+4,4)}, {vr(S[0],16)}")
    for t in range(2):
        for r in range(16):
            a(f"v_mov_b32 v{O[t]+r}, 0")
    for r in range(4):
        a(f"v_mov_b32 v{P+4+r}, 0")
        a(f"v_mov_b32 v{VR+4+r}, 0")
    stamp(a, 5)
    a(f"s_cmp_lg_u32 s{S_FB}, 0")
    a("s_cbranch_scc1 L_LOOP")
    S_D1 = 49
    a(f"s_mov_b32 s{S_D1}, 0")
    a(f"buffer_load_dwordx2 {vr(V_POLL,2)}, v{V_FP}, s[{SWS}:{SWS+3}], 0 offen sc1")

    def poll_eval():
        a("s_waitcnt vmcnt(0)")
        a(f"v_cmp_eq_u64 vcc, s[{S_TAG}:{S_TAG+1}], {vr(V_POLL,2)}")
        a("s_nop 3")
        a(f"s_and_b32 s{S_RDY}, vcc_lo, 0xff")
    def poll_until(label):
        a(f"s_mov_b32 s{S_SPIN}, {SPIN_MAX}")
        a.label(label)
        a(f"s_bitcmp1_b32 s{S_RDY}, s{S_C}")
        a(f"s_cbranch_scc1 {label}_OK")
        a(f"buffer_load_dwordx2 {vr(V_POLL,2)}, v{V_FP}, s[{SWS}:{SWS+3}], 0 offen sc1")
        a(f"s_sub_u32 s{S_SPIN}, s{S_SPIN}, 1")
        poll_eval()
        a(f"s_cmp_lg_u32 s{S_SPIN}, 0")
        a(f"s_cbranch_scc1 {label}")
        a.label(label + "_OK")

    def kv_dma(slot_sgpr):
        a(f"s_add_u32 s{S_A}, s{S_QB}, s{S_C}")
        a(f"s_and_b32 s{S_A}, s{S_A}, 7")
        a(f"s_add_u32 m0, s{slot_sgpr}, s{S_W4K}")
        a(f"s_lshl_b32 s{S_A}, s{S_A}, 15")
        for i in range(4):
            a(f"buffer_load_dwordx4 v{V_DM}, s[{SKV}:{SKV+3}], s{S_A} offen offset:{i*1024} sc1 lds")

    def wo_dma():
        a(f"s_mov_b32 m0, s{S_WOM}")
        for q in range(4):
            a(f"s_sub_u32 s{S_T}, s{S_WOG}, {q*192}")
            if "nowd" not in OPT:
                a(f"buffer_load_dwordx4 v{V_WOD}, s[{SWO}:{SWO+3}], s{S_T} offen offset:{q*1088} lds")
        a(f"s_add_u32 s{S_WOG}, s{S_WOG}, s{S_WOX}")
        a(f"s_xor_b32 s{S_WOX}, s{S_WOX}, {(16*896) ^ (12*896)}")

    def wo_read(c):
        for f in range(4 if "nowr" not in OPT else 0):
            d = (c * 4 + f) * 4
            a(f"ds_read_b64_tr_b16 {ar(d,2)}, v{V_WOR} offset:{f*64}")
            a(f"ds_read_b64_tr_b16 {ar(d+2,2)}, v{V_WOR} offset:{f*64 + 512}")

    def stage(first):
        sfx = "F" if first else "L"
        for u in range(8):
            n, T = u >> 1, u & 1
            Sc, Sn = S[T], S[1 - T]
            def E(i):
                a(f"v_exp_f32 v{Sc+i}, v{Sc+i}")
            def C(i):
                a(f"v_cvt_pk_bf16_f32 v{P+i}, v{Sc+2*i}, v{Sc+2*i+1}")
            def addr(nn):
                return (V_CUR, nn * 8192) if nn < 4 else (V_NXT, 0)
            if u == 6:
                a("s_waitcnt vmcnt(0) lgkmcnt(0)")
                a("s_barrier")
            elif T == 1:
                a("s_waitcnt lgkmcnt(2)")
            if T == 0 and "noprio" not in OPT:
                a(f"s_setprio {3 - ((u + 2) % 8) // 2}")
            a(f"v_mfma_f32_32x32x16_bf16 {vr(Sn,16)}, {vr(KR,4)}, {vr(Q[1-T],4)}, 0")
            if T == 0:
                va, off = addr(n + 1)
                a(f"ds_read_b128 {vr(KR,4)}, v{va} offset:{off}")
            E(0); E(1); E(2); E(3)
            if T == 1:
                a("s_waitcnt lgkmcnt(1)")
            a(f"v_mfma_f32_32x32x16_bf16 {vr(O[1-T],16)}, {vr(VR+4,4)}, {vr(P+4,4)}, {vr(O[1-T],16)}")
            if T == 0:
                va, off = addr(n)
                a(f"ds_read_b128 {vr(VR+4,4)}, v{va} offset:{off+3072}")
            C(0); C(1)
            E(4); E(5); E(6)
            if T == 1:
                a("s_waitcnt lgkmcnt(0)")
            a(f"v_mfma_f32_32x32x16_bf16 {vr(Sn,16)}, {vr(KR+4,4)}, {vr(Q[1-T]+4,4)}, {vr(Sn,16)}")
            if T == 0:
                va, off = addr(n + 1)
                a(f"ds_read_b128 {vr(KR+4,4)}, v{va} offset:{off+1024}")
            E(7); C(2); C(3)
            if u == 7 and "nop3" not in OPT and "nosel" not in OPT:
                if first:
                    wo_read(0)
                else:
                    a(f"s_cmp_eq_u32 s{S_FB}, 0")
                    a("s_cbranch_scc1 L_WOSEL")
                    a.label("L_WORET")
            E(8); E(9); E(10)
            if T == 0:
                a("s_waitcnt lgkmcnt(3)")
            a(f"v_mfma_f32_32x32x16_bf16 {vr(O[T],16)}, {vr(VR,4)}, {vr(P,4)}, {vr(O[T],16)}")
            if T == 1:
                va, off = addr(n + 1)
                a(f"ds_read_b128 {vr(VR,4)}, v{va} offset:{off+2048}")
            E(11); C(4); C(5)
            if first and u in (1, 3, 5):
                a(f"s_cmp_lg_u32 s{S_D1}, 0")
                a(f"s_cbranch_scc1 L_CK{u}")
                poll_eval()
                a(f"s_mov_b32 s{S_C}, 1")
                if u == 5:
                    poll_until("L_P1")
                else:
                    a(f"s_bitcmp1_b32 s{S_RDY}, 1")
                    a(f"s_cbranch_scc1 L_GO{u}")
                    a(f"buffer_load_dwordx2 {vr(V_POLL,2)}, v{V_FP}, s[{SWS}:{SWS+3}], 0 offen sc1")
                    a(f"s_branch L_CK{u}")
                    a.label(f"L_GO{u}")
                kv_dma(S_NXT)
                a(f"s_mov_b32 s{S_D1}, 1")
                a.label(f"L_CK{u}")
            WU = (0, 1)
            if u in WU and not first and "nop3" not in OPT:
                a(f"s_add_u32 s{S_T}, s{S_KPS}, s{S_FB}")
                a(f"s_cmp_lg_u32 s{S_T}, {WU.index(u)}")
                a(f"s_cbranch_scc1 L_WOD{u}{sfx}")
                wo_dma()
                a.label(f"L_WOD{u}{sfx}")
            if u in (6, 7):
                a(f"s_add_u32 s{S_C}, s{S_ST}, 2")
                a(f"s_cmp_lg_u32 s{S_KPS}, {u - 6}")
                a(f"s_cbranch_scc1 L_NODMA{u}{sfx}")
                a(f"s_cmp_ge_u32 s{S_C}, 8")
                a(f"s_cbranch_scc1 L_NODMA{u}{sfx}")
                poll_until(f"L_P2{u}{sfx}")
                kv_dma(S_PRV)
                a.label(f"L_NODMA{u}{sfx}")
            if u == 7:
                a(f"s_mov_b32 s{S_T}, s{S_CUR}")
                a(f"s_mov_b32 s{S_CUR}, s{S_NXT}")
                a(f"s_mov_b32 s{S_NXT}, s{S_PRV}")
                a(f"s_mov_b32 s{S_PRV}, s{S_T}")
                a(f"v_add_u32 v{V_CUR}, s{S_CUR}, v{V_KP}")
                a(f"v_add_u32 v{V_NXT}, s{S_NXT}, v{V_KP}")
                a(f"s_add_u32 s{S_ST}, s{S_ST}, 1")
                a(f"s_cmp_lt_u32 s{S_ST}, 8")
            E(12); E(13); E(14); E(15); C(6); C(7)

    stage(True)
    stamp(a, 6)
    a.raw(".p2align 6")
    a.label("L_LOOP")
    stage(False)
    a("s_cbranch_scc1 L_LOOP")
    stamp(a, 7)
    GX, GW = S[1], KR
    a(f"s_lshr_b32 s{S_C}, s{S_HH}, 2")
    a(f"v_mfma_f32_32x32x16_bf16 {vr(O[1],16)}, {vr(VR+4,4)}, {vr(P+4,4)}, {vr(O[1],16)}")
    a(f"s_lshl_b32 s{S_A}, s{S_QB}, 3")
    a(f"s_add_u32 s{S_C}, s{S_C}, s{S_A}")
    a(f"s_lshl_b32 s{S_A}, s{S_C}, 3")
    a(f"s_add_u32 s{S_A}, s{S_A}, s{S_W}")
    a(f"s_mul_i32 s{S_A}, s{S_A}, {4*896}")
    a(f"v_lshrrev_b32 v6, 4, v{V_LANE}")
    a("v_mul_u32_u24 v6, 896, v6")
    a(f"v_and_b32 v7, 15, v{V_LANE}")
    a("v_lshlrev_b32 v7, 4, v7")
    a("v_add_u32 v6, v6, v7")
    a("s_waitcnt lgkmcnt(0)")
    for q in range(4):
        a(f"buffer_load_dwordx4 {vr(GX+4*q,4)}, v6, s[{SX}:{SX+3}], s{S_A} offen offset:{q*256}")
    for q in range(4):
        a(f"buffer_load_dwordx4 {vr(GW+4*q,4)}, v7, s[{SG}:{SG+3}], 0 offen offset:{q*256}")
    a(f"s_xor_b32 s{S_A}, s{S_W4K}, {4*4096}")
    a(f"s_add_u32 s{S_A}, s{S_A}, {L_RED}")
    a(f"v_add_u32 v4, s{S_A}, v{V_L16}")
    a(f"v_add_u32 v5, s{S_XA}, v{V_L16}")
    for q in range(4):
        a(f"ds_write_b128 v4, {vr(O[1]+4*q,4)} offset:{q*1024}")
    a(f"v_mov_b32 v6, {f32hex(2.0**39)}")
    a(f"v_max_f32 v7, v{O[0]+12}, v{O[1]+12}")
    a(f"v_add_f32 v4, v{O[0]+12}, v{O[1]+12}")
    a("v_cmp_nlt_f32 vcc, v7, v6")
    a(f"v_cmp_u_f32 s[{S_A}:{S_A+1}], v4, v4")
    a(f"v_mov_b32 v6, {L_FB}")
    a("v_mov_b32 v7, 1")
    a("s_nop 1")
    a(f"s_or_b32 s{S_A}, vcc_hi, s{S_A+1}")
    a("s_cbranch_scc0 L_NOVOTE")
    a("ds_write_b32 v6, v7")
    a.label("L_NOVOTE")
    a("s_waitcnt lgkmcnt(0)")
    a("s_barrier")
    a("ds_read_b32 v7, v6")
    for q in range(4):
        a(f"ds_read_b128 {vr(S[0]+4*q,4)}, v5 offset:{q*1024}")
    a(f"s_cmp_lg_u32 s{S_FB}, 0")
    a("s_cbranch_scc1 L_FIN")
    a("s_waitcnt lgkmcnt(4)")
    a(f"v_readfirstlane_b32 s{S_A}, v7")
    a("s_nop 3")
    a(f"s_cmp_lg_u32 s{S_A}, 0")
    a("s_cbranch_scc1 L_FALLBACK")
    a.label("L_FIN")
    a("s_waitcnt lgkmcnt(0)")
    for r in range(16):
        a(f"v_add_f32 v{O[0]+r}, v{O[0]+r}, v{S[0]+r}")
    a(f"v_mov_b32 v4, v{O[0]+12}")
    a(f"v_mov_b32 v5, v{O[0]+12}")
    a(f"s_lshl_b32 s{S_A}, s{S_QB}, 3")
    a(f"s_add_u32 s{S_A}, s{S_A}, s{S_T0}")
    a("v_permlane32_swap_b32 v4, v5")
    a(f"s_lshl_b32 s{S_A}, s{S_A}, 5")
    a(f"s_add_u32 s{S_A}, s{S_A}, s{S_HH}")
    a("v_rcp_f32 v4, v5")
    a(f"s_lshl_b32 s{S_B}, s{S_A}, 11")
    a(f"s_add_u32 s{S_B}, s{S_B}, {OF_BASE}")
    for r in range(8):
        a(f"v_mul_f32 v{O[0]+r}, v{O[0]+r}, v4")
    for m in range(4):
        a(f"v_cvt_pk_bf16_f32 v{P+m}, v{O[0]+2*m}, v{O[0]+2*m+1}")
    a(f"buffer_store_dwordx4 {vr(P,4)}, v{V_L16}, s[{SWS}:{SWS+3}], s{S_B} offen sc1")
    for r in range(8, 16):
        a(f"v_mul_f32 v{O[0]+r}, v{O[0]+r}, v4")
    for m in range(4, 8):
        a(f"v_cvt_pk_bf16_f32 v{P+m}, v{O[0]+2*m}, v{O[0]+2*m+1}")
    a("s_mov_b32 exec_lo, 0")
    a(f"v_mov_b32 v{P+6}, 0")
    a(f"v_mov_b32 v{P+7}, 0")
    a("s_mov_b32 exec_lo, -1")
    a(f"buffer_store_dwordx4 {vr(P+4,4)}, v{V_L16}, s[{SWS}:{SWS+3}], s{S_B} offen offset:1024 sc1")
    stamp(a, 8)
    if "nop3" not in OPT:
        a(f"s_lshl_b32 s{S_B}, s{S_A}, 3")
        a(f"s_add_u32 s{S_B}, s{S_B}, {F3_BASE}")
        a(f"s_lshl_b32 s{S_A}, s{S_C}, 5")
        a(f"s_lshl_b32 s{S_T}, s{S_W}, 2")
        a(f"s_add_u32 s{S_A}, s{S_A}, s{S_T}")
        a(f"s_lshl_b32 s{S_T}, s{S_A}, 3")
        a(f"s_add_u32 s{S_T}, s{S_T}, {F3_BASE}")
        a(f"v_and_b32 v7, 3, v{V_LANE}")
        a(f"v_lshl_add_u32 v{V_FP}, v7, 3, s{S_T}")
        a(f"s_lshl_b32 s{S_A}, s{S_A}, 11")
        a(f"s_add_u32 s{S_A}, s{S_A}, {OF_BASE}")
        a("v_mov_b32 v4, 0")
        a("v_mov_b32 v5, 0")
        a("s_waitcnt vmcnt(2)")
        for d in range(0, 16, 2):
            a(f"v_dot2c_f32_bf16 v4, v{GX+d}, v{GW+d}")
            a(f"v_dot2c_f32_bf16 v5, v{GX+d+1}, v{GW+d+1}")
        a(f"v_lshrrev_b32 v6, 4, v{V_LANE}")
        a("v_lshlrev_b32 v6, 2, v6")
        a(f"s_lshl_b32 s{S_T}, s{S_W}, 4")
        a(f"s_add_u32 s{S_T}, s{S_T}, {L_GV}")
        a("v_add_f32 v4, v4, v5")
        a(f"v_add_u32 v6, s{S_T}, v6")
        for sh in (8, 4, 2, 1):
            a("s_nop 1")
            a(f"v_add_f32_dpp v4, v4, v4 row_ror:{sh} row_mask:0xf bank_mask:0xf")
        a(f"v_mul_f32 v4, {f32hex(-math.log2(math.e))}, v4")
        a("v_exp_f32 v4, v4")
        a("v_mov_b32 v7, 0")
        a("v_add_f32 v4, 1.0, v4")
        a("v_rcp_f32 v4, v4")
        a("s_nop 0")
        a("ds_write_b32 v6, v4")
        a("s_waitcnt vmcnt(0)")
        a("s_mov_b64 exec, 1")
        a(f"buffer_store_dwordx2 {vr(V_TAGV,2)}, v7, s[{SWS}:{SWS+3}], s{S_B} offen sc1")
        a("s_mov_b64 exec, -1")
        a("s_waitcnt lgkmcnt(0)")
        a("s_barrier")
        ACC = 8
        OFR = 72
        a(f"v_and_b32 v5, 31, v{V_LANE}")
        a("v_lshlrev_b32 v104, 2, v5")
        a(f"v_add_u32 v104, {L_GV}, v104")
        a("ds_read_b32 v105, v104")
        a(f"s_lshl_b32 s{S_T}, s{S_C}, 5")
        a(f"v_add_u32 v5, s{S_T}, v5")
        a("v_mul_u32_u24 v5, 896, v5")
        a(f"v_lshrrev_b32 v6, 5, v{V_LANE}")
        a("v_lshl_add_u32 v107, v6, 3, v5")
        a(f"s_lshl_b32 s{S_B}, s{S_FT0}, 6")
        a(f"s_lshl_b32 s{S_T}, s{S_W}, 5")
        a(f"s_add_u32 s{S_B}, s{S_B}, s{S_T}")
        a(f"s_and_b32 s{S_C}, s{S_HH}, 2")
        a(f"s_lshr_b32 s{S_T}, s{S_W}, 1")
        a(f"s_add_u32 s{S_C}, s{S_C}, s{S_T}")
        a(f"s_cmp_eq_u32 s{S_C}, 5")
        a(f"s_cselect_b32 s{S_C}, {OOB}, s{S_B}")
        a(f"s_lshl_b32 s{S_T}, s{S_W}, 11")
        a(f"v_add_u32 v108, s{S_T}, v{V_L16}")
        a(f"v_add_u32 v109, 0x10000, v108")
        a(f"s_lshl_b32 s{S_T}, s{S_W}, 14")
        a(f"v_add_u32 v110, s{S_T}, v{V_L16}")
        a(f"s_mov_b32 s{S_SPIN}, {SPIN_MAX}")
        a.label("L_P3")
        a(f"buffer_load_dwordx2 {vr(V_POLL,2)}, v{V_FP}, s[{SWS}:{SWS+3}], 0 offen sc1")
        a(f"s_sub_u32 s{S_SPIN}, s{S_SPIN}, 1")
        a(f"s_cmp_eq_u32 s{S_SPIN}, 0")
        a("s_cbranch_scc1 L_P3_OK")
        a("s_waitcnt vmcnt(0)")
        a(f"v_cmp_eq_u64 vcc, s[{S_TAG}:{S_TAG+1}], {vr(V_POLL,2)}")
        a("s_nop 3")
        a("s_cmp_eq_u64 vcc, -1")
        a("s_cbranch_scc0 L_P3")
        a.label("L_P3_OK")
        stamp(a, 9)
        a(f"s_add_u32 s{S_B}, s{S_A}, 4096")
        for i in range(8):
            a(f"buffer_load_dwordx4 {vr(OFR+4*i,4)}, v{V_L16}, s[{SWS}:{SWS+3}], s{S_A if i < 4 else S_B} offen offset:{(i&3)*1024} sc1")
        for i in range(8):
            a(f"s_waitcnt vmcnt({7-i})")
            for f in range(4):
                c = "0" if i == 0 else vr(ACC + 16*f, 16)
                a(f"v_mfma_f32_32x32x16_bf16 {vr(ACC+16*f,16)}, {ar((i*4+f)*4,4)}, {vr(OFR+4*i,4)}, {c}")
        stamp(a, 10)
        a("s_waitcnt lgkmcnt(0)")
        a("v_sub_f32 v106, 1.0, v105")
        a("s_nop 7")
        for d in range(8):
            va = 108 if d < 4 else 109
            for q in range(2):
                a(f"ds_write_b128 v{va}, {vr(ACC + 8*d + 4*q, 4)} offset:{L_R3 + (d&3)*16384 + q*1024}")
        a("s_waitcnt lgkmcnt(0)")
        a("s_barrier")
        for src in range(8):
            for q in range(2):
                a(f"ds_read_b128 {vr(ACC + 8*src + 4*q, 4)}, v110 offset:{L_R3 + src*2048 + q*1024}")
        for br in range(2):
            b0 = ACC + 32 * br
            a(f"s_waitcnt lgkmcnt({12 - 8*br})")
            for r in range(8):
                a(f"v_add_f32 v{b0+r}, v{b0+r}, v{b0+8+r}")
            a(f"s_waitcnt lgkmcnt({8 - 8*br})")
            for r in range(8):
                a(f"v_add_f32 v{b0+16+r}, v{b0+16+r}, v{b0+24+r}")
            for r in range(8):
                a(f"v_add_f32 v{b0+r}, v{b0+r}, v{b0+16+r}")
        for r in range(8):
            a(f"v_mul_f32 v{ACC+r}, v{ACC+r}, v105")
        for r in range(8):
            a(f"v_fmac_f32 v{ACC+r}, v{ACC+32+r}, v106")
        for m in range(4):
            a(f"v_cvt_pk_bf16_f32 v{OFR+m}, v{ACC+2*m}, v{ACC+2*m+1}")
        a(f"buffer_store_dwordx2 {vr(OFR,2)}, v107, s[{SOUT}:{SOUT+3}], s{S_C} offen")
        a(f"buffer_store_dwordx2 {vr(OFR+2,2)}, v107, s[{SOUT}:{SOUT+3}], s{S_C} offen offset:16")
    stamp_flush(a, 11 if "nop3" not in OPT else 9, S_W)
    a.label("L_END")
    a("s_endpgm")

    if "nop3" not in OPT and "nosel" not in OPT:
        a.label("L_WOSEL")
        for c in range(1, 7):
            a(f"s_cmp_eq_u32 s{S_ST}, {c}")
            a(f"s_cbranch_scc1 L_WOR{c}")
        for c in (7, 1, 2, 3, 4, 5, 6):
            a.label(f"L_WOR{c}")
            wo_read(c)
            a("s_branch L_WORET")

    a.label("L_FALLBACK")
    a(f"s_mov_b32 s{S_FB}, 64")
    a("s_mov_b32 exec_lo, 0")
    for t in range(2):
        a(f"v_mov_b32 v{Q[t]+6}, 0")
        a(f"v_mov_b32 v{Q[t]+7}, 0")
    a("s_mov_b32 exec_lo, -1")
    a("v_mov_b32 v4, 0xff800000")
    a("v_mov_b32 v5, 0xff800000")
    a(f"s_mov_b32 s{S_A}, 0")
    a("s_waitcnt vmcnt(0) lgkmcnt(0)")
    a("s_barrier")
    a.label("L_FBMAX")
    a(f"buffer_load_dwordx4 {vr(KR,4)}, v{V_L16}, s[{SKV}:{SKV+3}], s{S_A} offen sc1")
    a(f"buffer_load_dwordx4 {vr(KR+4,4)}, v{V_L16}, s[{SKV}:{SKV+3}], s{S_A} offen offset:1024 sc1")
    a("s_waitcnt vmcnt(0)")
    for t in range(2):
        a(f"v_mfma_f32_32x32x16_bf16 {vr(S[t],16)}, {vr(KR,4)}, {vr(Q[t],4)}, 0")
        a(f"v_mfma_f32_32x32x16_bf16 {vr(S[t],16)}, {vr(KR+4,4)}, {vr(Q[t]+4,4)}, {vr(S[t],16)}")
    a("s_nop 15")
    for t in range(2):
        for r in range(0, 16, 2):
            a(f"v_max3_f32 v{4+t}, v{4+t}, v{S[t]+r}, v{S[t]+r+1}")
    a(f"s_add_u32 s{S_A}, s{S_A}, 4096")
    a(f"s_cmp_lt_u32 s{S_A}, 262144")
    a("s_cbranch_scc1 L_FBMAX")
    a(f"s_mov_b32 s{S_CUR}, {L_RING[0]}")
    a(f"s_mov_b32 s{S_NXT}, {L_RING[1]}")
    a(f"s_mov_b32 s{S_C}, 0")
    kv_dma(S_CUR)
    a(f"s_mov_b32 s{S_C}, 1")
    kv_dma(S_NXT)
    a("s_waitcnt vmcnt(4)")
    a("s_barrier")
    a("s_branch L_SETM")

    nsg = 102 if STAMP else 78
    return a.text() + f"""
.section .rodata,"a"
.p2align 6
.amdhsa_kernel {KNAME}
  .amdhsa_next_free_vgpr 256
  .amdhsa_next_free_sgpr {nsg}
  .amdhsa_accum_offset 128
  .amdhsa_group_segment_fixed_size 0
  .amdhsa_kernarg_size 80
  .amdhsa_user_sgpr_count 2
  .amdhsa_user_sgpr_kernarg_segment_ptr 1
  .amdhsa_system_sgpr_workgroup_id_x 1
.end_amdhsa_kernel
"""

def main():
    global STAMP
    if len(sys.argv) > 2 and sys.argv[2] == "stamp": STAMP = True
    OPT.update(sys.argv[3:])
    hdr = open("cdna_kernels/" + NAME + ".s.ref").read().split("\n")
    top = [l for l in hdr if l.startswith(";") and "@launch" not in l and "Override" not in l and "grid=ceil" not in l]
    out = "\n".join(top[:11]) + "\n"
    out += f"; @launch grid=(256,1,1) block=(512,1,1) lds={LDS_BYTES}\n"
    out += '.amdgcn_target "amdgcn-amd-amdhsa--gfx950"\n'
    out += gen()
    path = sys.argv[1] if len(sys.argv) > 1 else "cdna_kernels/" + NAME + ".s"
    open(path, "w").write(out)

if __name__ == "__main__":
    main()
```

```python
import struct, sys, math

NAME = "gated_mix__softmax_full_mha__softmax_full_mha__prompt"
KNAME = NAME + "_kernel"

def f32hex(x):
    return "0x%08x" % struct.unpack("<I", struct.pack("<f", x))[0]

class Asm:
    def __init__(self):
        self.lines = []
    def __call__(self, s):
        for ln in s.strip("\n").split("\n"):
            self.lines.append("    " + ln.strip())
    def label(self, l):
        self.lines.append(l + ":")
    def raw(self, s):
        self.lines.append(s)
    def text(self):
        return "\n".join(self.lines) + "\n"

class Cnt:
    def __init__(self):
        self.q = []
    def issue(self, tag, n=1):
        for _ in range(n):
            self.q.append(tag)
    def need(self, *tags):
        idx = -1
        for i, t in enumerate(self.q):
            if t in tags:
                idx = i
        if idx < 0:
            return None
        n = len(self.q) - 1 - idx
        self.q = self.q[idx + 1:]
        return n
    def clear(self):
        self.q = []

def vr(lo, n):
    return f"v[{lo}:{lo+n-1}]"
def ar(lo, n):
    return f"a[{lo}:{lo+n-1}]"

KV_BASE = 0
OF_BASE = 8 << 20
F2_BASE = 12 << 20
F3_BASE = (12 << 20) + (64 << 10)
WS_SIZE = 13 << 20
X_BYTES = 2048 * 448 * 2
W_BYTES = 448 * 1344 * 2
WO_BYTES = 448 * 448 * 2
OUT_BYTES = 2048 * 448 * 2
OOB = 0x40000000
QSCALE = math.log2(math.e) / math.sqrt(28.0)
SPIN_MAX = 200000

L_W = 0
L_XB = 86016
L_XA = 126976
L_RING = [L_XA, 0, 32768]
L_WO = 65536
L_R3 = 0
L_RED = L_XA
L_FB = L_XA + 32768
L_GV = L_FB + 64
LDS_BYTES = L_GV + 128

STAMP = False
OPT = set()
STAMP_BASE = 64 << 20
STR = [78 + 2*i for i in range(12)] + [36, 38, 40, 42]
def dbgt(a, slot, neg=False, s_save=None):
    if "dbgt" not in OPT: return
    if s_save is None:
        a("s_memrealtime s[78:79]")
        a("s_waitcnt lgkmcnt(0)")
    else:
        a(f"s_mov_b32 s78, s{s_save}")
    if neg: a("s_not_b32 s78, s78")
    a("v_mov_b32 v126, s78")
    a(f"v_mov_b32 v127, {4*slot}")
    a("s_mov_b64 exec, 1")
    a("buffer_atomic_umax v126, v127, s[32:35], 0 offen")
    a("s_mov_b64 exec, -1")
def pstamp(a, i):
    if STAMP and "pst" in OPT:
        a(f"s_memtime s[{STR[i]}:{STR[i]+1}]")
def stamp(a, i, real=False):
    if not STAMP: return
    if "pst" in OPT and i >= 2: return
    a(f"{'s_memrealtime' if real else 's_memtime'} s[{STR[i]}:{STR[i]+1}]")
def stamp_flush(a, n, s_w):
    if not STAMP: return
    a("s_waitcnt vmcnt(0) lgkmcnt(0)")
    a(f"s_memtime s[{STR[n]}:{STR[n]+1}]")
    a(f"s_memrealtime s[{STR[n+1]}:{STR[n+1]+1}]")
    a("s_waitcnt lgkmcnt(0)")
    a("s_mov_b32 s14, 0x10000000")
    a("s_lshl_b32 s59, s2, 3")
    a(f"s_add_u32 s59, s59, s{s_w}")
    a("s_lshl_b32 s59, s59, 7")
    a(f"s_add_u32 s59, s59, {STAMP_BASE}")
    a("v_mov_b32 v1, 0")
    a("s_mov_b64 exec, 1")
    a("s_getreg_b32 s60, hwreg(HW_REG_XCC_ID)")
    a("v_mov_b32 v2, s60")
    a("v_mov_b32 v3, 0")
    a("buffer_store_dwordx2 v[2:3], v1, s[12:15], s59 offen offset:120")
    for i in range(n + 2):
        a(f"v_mov_b32 v2, s{STR[i]}")
        a(f"v_mov_b32 v3, s{STR[i]+1}")
        a(f"buffer_store_dwordx2 v[2:3], v1, s[12:15], s59 offen offset:{8*i}")
        a("s_nop 1")

def srd(a, d, lo, hi, nbytes):
    a(f"s_mov_b32 s{d}, s{lo}")
    a(f"s_mov_b32 s{d+1}, s{hi}")
    a(f"s_mov_b32 s{d+2}, {nbytes}")
    a(f"s_mov_b32 s{d+3}, 0x00020000")

def gen():
    a = Asm()
    a.raw(".text")
    a.raw(f".globl {KNAME}")
    a.raw(".p2align 8")
    a.raw(f".type {KNAME},@function")
    a.label(KNAME)
    SX, SW, SWS, SWO, SG, SKV, SOUT, SDBG = 4, 8, 12, 16, 20, 24, 28, 32
    S_HH, S_QB, S_W, S_T, S_TT, S_R = 56, 57, 58, 59, 60, 61
    S_A, S_B, S_C = 62, 63, 64
    S_XA, S_XB = 65, 66
    S_TAG = 68
    S_RDY = 70
    S_ST, S_CUR, S_NXT, S_PRV = 71, 72, 73, 74
    S_SPIN = 75
    S_W4K = 76
    S_FB = 77
    V_LANE, V_L16 = 2, 3
    a("s_cmp_ge_u32 s2, 256")
    a("s_cbranch_scc1 L_END")
    stamp(a, 0); stamp(a, 1, True)
    a("s_load_dwordx16 s[36:51], s[0:1], 0")
    a("s_load_dwordx4 s[52:55], s[0:1], 64")
    a(f"s_memrealtime s[{S_TAG}:{S_TAG+1}]")
    LH = 3 if "map2" in OPT else 2 if "map1" in OPT else 5 if "map4" in OPT else 4
    a(f"s_and_b32 s{S_T}, s2, 7")
    a(f"s_lshr_b32 s{S_A}, s2, 3")
    a(f"s_and_b32 s{S_HH}, s{S_T}, {(32 >> LH) - 1}")
    a(f"s_lshl_b32 s{S_HH}, s{S_HH}, {LH}")
    a(f"s_and_b32 s{S_B}, s{S_A}, {(1 << LH) - 1}")
    a(f"s_add_u32 s{S_HH}, s{S_HH}, s{S_B}")
    a(f"s_lshr_b32 s{S_QB}, s{S_T}, {5 - LH}")
    a(f"s_lshl_b32 s{S_QB}, s{S_QB}, {5 - LH}")
    a(f"s_lshr_b32 s{S_A}, s{S_A}, {LH}")
    a(f"s_add_u32 s{S_QB}, s{S_QB}, s{S_A}")
    if LH == 2:
        a(f"s_lshl_b32 s{S_B}, s{S_B}, 1")
    else:
        a(f"s_and_b32 s{S_B}, s{S_B}, 7")
        a(f"s_lshl_b32 s{S_A}, s{S_A}, 1")
    a(f"s_add_u32 s{S_R}, s{S_A}, s{S_B}")
    a(f"s_add_u32 s{S_R}, s{S_R}, s{S_T}")
    a(f"s_mul_i32 s{S_A}, s{S_R}, 37")
    a(f"s_lshr_b32 s{S_A}, s{S_A}, 8")
    a(f"s_mul_i32 s{S_A}, s{S_A}, 7")
    a(f"s_sub_u32 s{S_R}, s{S_R}, s{S_A}")
    if "norot" in OPT: a(f"s_mov_b32 s{S_R}, 0")
    a("v_lshrrev_b32 v1, 6, v0")
    a(f"v_and_b32 v{V_LANE}, 63, v0")
    a(f"v_readfirstlane_b32 s{S_W}, v1")
    a(f"v_lshlrev_b32 v{V_L16}, 4, v{V_LANE}")
    a(f"s_lshl_b32 s{S_TT}, s{S_QB}, 3")
    a("s_nop 2")
    a(f"s_add_u32 s{S_TT}, s{S_TT}, s{S_W}")
    a(f"s_lshl_b32 s{S_W4K}, s{S_W}, 12")
    a(f"s_add_u32 s{S_XA}, s{S_W4K}, {L_XA}")
    a(f"s_add_u32 s{S_XB}, s{S_W4K}, {L_XB}")

    ACCQ, ACCK, ACCV = 16, 32, 48
    XF = 64
    V_XD, V_XR, V_WD, V_WR = 96, 100, 104, 105
    V_CUR, V_NXT, V_DM, V_FP, V_WOD, V_WOR, V_TAGV, V_KP, V_QR0, V_QR1, V_POLL = 112, 113, 114, 115, 116, 117, 118, 120, 121, 122, 124
    a(f"v_lshrrev_b32 v4, 3, v{V_LANE}")
    a(f"v_and_b32 v5, 7, v{V_LANE}")
    a(f"s_lshl_b32 s{S_T}, s{S_TT}, 5")
    a(f"v_add_u32 v6, s{S_T}, v4")
    a("v_mul_u32_u24 v6, 896, v6")
    a("v_lshrrev_b32 v7, 1, v4")
    a("v_xor_b32 v8, v7, v5")
    a("v_or_b32 v7, 4, v7")
    a("v_xor_b32 v7, v7, v5")
    a(f"v_lshl_add_u32 v{V_XD}, v8, 4, v6")
    a("v_lshl_add_u32 v7, v7, 4, v6")
    a(f"v_add_u32 v{V_XD+1}, {8*896 - 1024}, v7")
    a(f"v_add_u32 v{V_XD+2}, {16*896 - 2048}, v{V_XD}")
    a(f"v_add_u32 v{V_XD+3}, {24*896 - 3072}, v7")
    a(f"v_mul_u32_u24 v5, 43, v{V_LANE}")
    a("v_lshrrev_b32 v5, 9, v5")
    a("v_mul_u32_u24 v6, 12, v5")
    a(f"v_sub_u32 v6, v{V_LANE}, v6")
    a("v_lshl_add_u32 v5, v1, 3, v5")
    a("v_mul_u32_u24 v5, 2688, v5")
    a("v_lshrrev_b32 v7, 2, v6")
    a("v_mul_u32_u24 v7, 896, v7")
    a("v_add_u32 v5, v5, v7")
    a("v_and_b32 v6, 3, v6")
    a("v_lshl_add_u32 v5, v6, 4, v5")
    a(f"s_and_b32 s{S_T}, s{S_HH}, 15")
    a(f"s_mul_i32 s{S_T}, s{S_T}, 56")
    a(f"v_add_u32 v{V_WD}, s{S_T}, v5")
    S_W768 = 67
    a(f"s_mul_i32 s{S_W768}, s{S_W}, 1536")
    pstamp(a, 2)
    a("s_waitcnt lgkmcnt(0)")
    pstamp(a, 3)
    srd(a, SX, 36, 37, X_BYTES)
    a(f"s_cmp_ge_u32 s{S_HH}, 16")
    a(f"s_cselect_b32 s{SW}, s44, s38")
    a(f"s_cselect_b32 s{SW+1}, s45, s39")
    a(f"s_mov_b32 s{SW+2}, {W_BYTES}")
    a(f"s_mov_b32 s{SW+3}, 0x00020000")

    vm = Cnt()
    lg = Cnt()
    def wait_vm(*tags):
        n = vm.need(*tags)
        if n is not None:
            a(f"s_waitcnt vmcnt({n})")
    def wait_lg(*tags):
        n = lg.need(*tags)
        if n is not None:
            a(f"s_waitcnt lgkmcnt({min(n, 15)})")
    def chunk_of(s):
        a(f"s_add_u32 s{S_A}, s{S_R}, {s}")
        a(f"s_sub_u32 s{S_B}, s{S_A}, 7")
        a(f"s_min_u32 s{S_A}, s{S_A}, s{S_B}")
    def dma_x(s):
        chunk_of(s)
        base = S_XA if (s & 1) == 0 else S_XB
        a(f"s_mov_b32 m0, s{base}")
        a(f"s_lshl_b32 s{S_B}, s{S_A}, 7")
        for i in range(4):
            a(f"buffer_load_dwordx4 v{V_XD+i}, s[{SX}:{SX+3}], s{S_B} offen offset:{i*1024} lds")
            vm.issue(f"X{s}")
    def dma_w(s):
        chunk_of(s)
        a("s_mov_b32 exec_hi, 0xffff")
        a(f"s_mul_i32 s{S_A}, s{S_A}, {64*2688}")
        a(f"s_add_u32 m0, s{S_W768}, {64*s*192}")
        a(f"s_add_u32 s{S_B}, s{S_A}, {4*2688 - 768}")
        a(f"buffer_load_dwordx4 v{V_WD}, s[{SW}:{SW+3}], s{S_A} offen lds")
        a(f"buffer_load_dwordx4 v{V_WD}, s[{SW}:{SW+3}], s{S_B} offen offset:768 lds")
        vm.issue(f"W{s}", 2)
        a("s_mov_b32 exec_hi, -1")

    dma_x(0)
    dma_w(0)
    pstamp(a, 4)
    dma_x(1)
    dma_w(1)
    pstamp(a, 5)
    srd(a, SG, 48, 49, 896)
    srd(a, SWS, 54, 55, WS_SIZE)
    srd(a, SOUT, 50, 51, OUT_BYTES)
    srd(a, SDBG, 52, 53, 256)
    a(f"s_cmp_ge_u32 s{S_W}, 4")
    a(f"s_cselect_b32 s{SWO}, s46, s40")
    a(f"s_cselect_b32 s{SWO+1}, s47, s41")
    a(f"s_sub_u32 s{SWO}, s{SWO}, 4096")
    a(f"s_subb_u32 s{SWO+1}, s{SWO+1}, 0")
    a(f"s_mov_b32 s{SWO+2}, {WO_BYTES + 4096}")
    a(f"s_mov_b32 s{SWO+3}, 0x00020000")
    a(f"s_lshl_b32 s{S_T}, s{S_HH}, 18")
    a(f"s_add_u32 s{SKV}, s54, s{S_T}")
    a(f"s_addc_u32 s{SKV+1}, s55, 0")
    a(f"s_mov_b32 s{SKV+2}, 262144")
    a(f"s_mov_b32 s{SKV+3}, 0x00020000")
    dbgt(a, 4, True, S_TAG); dbgt(a, 5, False, S_TAG)
    a(f"s_or_b32 s{S_TAG}, s{S_TAG}, 1")
    a(f"s_or_b32 s{S_T}, s2, s{S_W}")
    a(f"s_cmp_lg_u32 s{S_T}, 0")
    a("s_cbranch_scc1 L_NOTAG")
    a(f"v_mov_b32 v4, s{S_TAG}")
    a(f"v_mov_b32 v5, s{S_TAG+1}")
    a("v_mov_b32 v6, 0")
    a("s_mov_b64 exec, 1")
    a(f"buffer_store_dwordx2 v[4:5], v6, s[{SDBG}:{SDBG+3}], 0 offen sc1")
    a("s_mov_b64 exec, -1")
    a.label("L_NOTAG")
    if "notlb" not in OPT:
        a(f"s_cmp_lg_u32 s{S_W}, 7")
        a("s_cbranch_scc1 L_NOTOUCH")
        a("v_mov_b32 v6, 0")
        a(f"s_lshl_b32 s{S_T}, s{S_TT}, 12")
        a("s_mov_b64 exec, 1")
        a(f"buffer_load_dword v14, v6, s[{SKV}:{SKV+3}], s{S_T} offen")
        a(f"s_lshl_b32 s{S_T}, s{S_QB}, 8")
        a(f"s_add_u32 s{S_T}, s{S_T}, s{S_HH}")
        a(f"s_lshl_b32 s{S_T}, s{S_T}, 11")
        a(f"s_add_u32 s{S_T}, s{S_T}, {OF_BASE}")
        a(f"buffer_load_dword v9, v6, s[{SWS}:{SWS+3}], s{S_T} offen")
        a(f"s_mov_b32 s{S_T}, {F3_BASE + 32768}")
        a(f"buffer_load_dword v10, v6, s[{SWS}:{SWS+3}], s{S_T} offen")
        a(f"s_mul_i32 s{S_T}, s{S_QB}, {256*896}")
        a(f"buffer_load_dword v11, v6, s[{SOUT}:{SOUT+3}], s{S_T} offen")
        a(f"s_movk_i32 s{S_T}, 4096")
        a(f"buffer_load_dword v12, v6, s[{SWO}:{SWO+3}], s{S_T} offen")
        a(f"buffer_load_dword v13, v6, s[{SG}:{SG+3}], 0 offen")
        a("s_mov_b64 exec, -1")
        a.label("L_NOTOUCH")
    a(f"v_and_b32 v4, 31, v{V_LANE}")
    a(f"v_lshrrev_b32 v5, 5, v{V_LANE}")
    a("v_lshrrev_b32 v6, 1, v4")
    a("v_and_b32 v6, 7, v6")
    a("v_lshlrev_b32 v7, 7, v4")
    a(f"v_add_u32 v7, s{S_XB}, v7")
    for j in range(4):
        a(f"v_add_u32 v8, {2*j}, v5")
        a("v_xor_b32 v8, v8, v6")
        a(f"v_lshl_add_u32 v{V_XR+j}, v8, 4, v7")
    a(f"v_bfe_u32 v6, v{V_LANE}, 2, 2")
    a("v_lshl_add_u32 v6, v5, 3, v6")
    a("v_mul_u32_u24 v6, 192, v6")
    a(f"v_bfe_u32 v7, v{V_LANE}, 4, 1")
    a("v_lshl_add_u32 v6, v7, 5, v6")
    a(f"v_and_b32 v7, 3, v{V_LANE}")
    a(f"v_lshl_add_u32 v{V_WR}, v7, 3, v6")
    a(f"v_add_u32 v{V_WR+1}, {14*3072}, v{V_WR}")
    S_T0, S_FT0, S_WOM, S_WOG, S_WOX, S_KPS = 44, 3, 45, 46, 47, 48
    a(f"s_and_b32 s{S_A}, s{S_W}, 3")
    a(f"s_lshr_b32 s{S_B}, s{S_W}, 2")
    a(f"s_mov_b32 s{S_KPS}, s{S_B}")
    a(f"s_lshl_b32 s{S_T}, s{S_A}, 1")
    a(f"s_add_u32 s{S_T0}, s{S_T}, s{S_B}")
    a(f"s_lshl_b32 s{S_T}, s{S_T0}, 12")
    a(f"s_add_u32 s{S_T}, s{S_T}, {L_XB}")
    a(f"v_add_u32 v{V_QR0}, s{S_T}, v{V_L16}")
    a(f"s_xor_b32 s{S_T}, s{S_T0}, 1")
    a(f"s_lshl_b32 s{S_T}, s{S_T}, 12")
    a(f"s_add_u32 s{S_T}, s{S_T}, {L_XB}")
    a(f"v_add_u32 v{V_QR1}, s{S_T}, v{V_L16}")
    a(f"s_lshl_b32 s{S_T}, s{S_B}, 12")
    a(f"v_add_u32 v{V_KP}, s{S_T}, v{V_L16}")
    a(f"v_add_u32 v{V_DM}, s{S_W4K}, v{V_L16}")
    a(f"s_lshl_b32 s{S_T}, s{S_HH}, 3")
    a(f"s_add_u32 s{S_T}, s{S_T}, s{S_W}")
    a(f"s_lshl_b32 s{S_T}, s{S_T}, 6")
    a(f"s_add_u32 s{S_T}, s{S_T}, {F2_BASE}")
    a(f"v_add_u32 v5, s{S_QB}, v{V_LANE}")
    a("v_and_b32 v5, 7, v5")
    a(f"v_lshl_add_u32 v{V_FP}, v5, 3, s{S_T}")
    a(f"s_mov_b32 s{S_FB}, 0")
    a(f"s_mov_b32 s{S_RDY}, 1")
    a(f"s_and_b32 s{S_T}, s{S_HH}, 3")
    a(f"s_lshl_b32 s{S_FT0}, s{S_T}, 2")
    a(f"s_cmp_eq_u32 s{S_T}, 3")
    a(f"s_cselect_b32 s{S_FT0}, 11, s{S_FT0}")
    a(f"v_lshrrev_b32 v4, 4, v{V_LANE}")
    a(f"v_mul_u32_u24 v5, {4*896}, v4")
    a(f"v_and_b32 v6, 15, v{V_LANE}")
    a("v_lshl_add_u32 v5, v6, 4, v5")
    a(f"s_lshl_b32 s{S_T}, s{S_FT0}, 6")
    a(f"v_add_u32 v{V_WOD}, s{S_T}, v5")
    a(f"s_mul_i32 s{S_WOM}, s{S_W}, 4352")
    a(f"s_add_u32 s{S_WOM}, s{S_WOM}, {L_WO}")
    a(f"v_bfe_u32 v4, v{V_LANE}, 2, 2")
    a("v_mul_u32_u24 v4, 1088, v4")
    a(f"v_lshrrev_b32 v5, 5, v{V_LANE}")
    a("v_lshl_add_u32 v4, v5, 8, v4")
    a(f"v_bfe_u32 v6, v{V_LANE}, 4, 1")
    a("v_lshl_add_u32 v4, v6, 5, v4")
    a(f"v_and_b32 v6, 3, v{V_LANE}")
    a("v_lshl_add_u32 v4, v6, 3, v4")
    a(f"v_add_u32 v{V_WOR}, s{S_WOM}, v4")
    a(f"s_mul_i32 s{S_WOG}, s{S_A}, {4*28*896}")
    a(f"s_add_u32 s{S_WOG}, s{S_WOG}, 4096")
    a(f"s_mov_b32 s{S_WOX}, {16*896}")
    a(f"v_mov_b32 v6, {L_FB}")
    a("v_mov_b32 v7, 0")
    a("ds_write_b32 v6, v7")
    for r in range(16, 64):
        a(f"v_mov_b32 v{r}, 0")

    def read_x(s):
        off = (L_XA - L_XB) if (s & 1) == 0 else 0
        for j in range(4):
            a(f"ds_read_b128 {vr(XF + (s&1)*16 + 4*j, 4)}, v{V_XR+j} offset:{off}")
            lg.issue(f"XR{s}")
    def read_w(ks):
        base = V_WR if ks < 14 else V_WR + 1
        off = (ks % 14) * 3072
        st = ks & 1
        for seg in (1, 2, 0):
            d = st * 12 + seg * 4
            a(f"ds_read_b64_tr_b16 {ar(d,2)}, v{base} offset:{off + seg*64}")
            a(f"ds_read_b64_tr_b16 {ar(d+2,2)}, v{base} offset:{off + seg*64 + 768}")
            lg.issue(f"WR{ks}", 2)

    stamp(a, 2)
    pstamp(a, 6)
    wait_vm("X0")
    read_x(0)
    wait_vm("W0")
    pstamp(a, 7)
    a("s_barrier")
    pstamp(a, 8)
    stamp(a, 3)
    dbgt(a, 10)
    read_w(0)
    wait_lg("XR0")
    dma_x(2)
    dma_w(2)
    pstamp(a, 9)
    for ks in range(28):
        s, j = divmod(ks, 4)
        if j == 2 and s + 1 < 7:
            wait_vm(f"X{s+1}")
            read_x(s + 1)
        if j == 3 and s + 1 < 7:
            wait_vm(f"W{s+1}")
            a("s_barrier")
        if ks + 1 < 28:
            read_w(ks + 1)
        wait_lg(f"WR{ks}", f"XR{s}")
        st = ks & 1
        x = vr(XF + (s & 1) * 16 + 4 * j, 4)
        w = lambda seg: ar(st * 12 + seg * 4, 4)
        a(f"v_mfma_f32_32x32x16_bf16 {vr(ACCK,16)}, {w(1)}, {x}, {vr(ACCK,16)}")
        a(f"v_mfma_f32_32x32x16_bf16 {vr(ACCV,16)}, {x}, {w(2)}, {vr(ACCV,16)}")
        a(f"v_mfma_f32_32x32x16_bf16 {vr(ACCQ,16)}, {w(0)}, {x}, {vr(ACCQ,16)}")
        if j == 3 and s + 3 < 7:
            wait_lg(f"XR{s+1}")
            dma_x(s + 3)
            dma_w(s + 3)
        if ks == 20:
            a("v_mov_b32 v4, 0")
            a(f"buffer_load_dwordx2 {vr(V_TAGV,2)}, v4, s[{SDBG}:{SDBG+3}], 0 offen sc1")
            vm.issue("TAG")
    stamp(a, 4)
    dbgt(a, 6)
    pstamp(a, 10)
    PK = 64
    a(f"s_lshl_b32 s{S_A}, s{S_TT}, 12")
    a(f"v_add_u32 v4, s{S_XA}, v{V_L16}")
    a(f"v_add_u32 v5, s{S_XB}, v{V_L16}")
    a(f"s_mov_b32 s{S_B}, {f32hex(QSCALE)}")
    a("s_nop 5")
    for m in range(8):
        a(f"v_cvt_pk_bf16_f32 v{PK+m}, v{ACCK+2*m}, v{ACCK+2*m+1}")
    a("s_mov_b32 exec_lo, 0")
    a(f"v_mov_b32 v{PK+6}, 0x3f803f80")
    a(f"v_mov_b32 v{PK+7}, 0x00003f80")
    a("s_mov_b32 exec_lo, -1")
    for m in range(2):
        a(f"buffer_store_dwordx4 {vr(PK+4*m,4)}, v{V_L16}, s[{SKV}:{SKV+3}], s{S_A} offen offset:{1024*m} sc1")
    for m in range(8):
        a(f"v_cvt_pk_bf16_f32 v{PK+8+m}, v{ACCV+2*m}, v{ACCV+2*m+1}")
    a("s_mov_b32 exec_lo, 0x10000000")
    a("s_mov_b32 exec_hi, 0x10000000")
    for m in range(8):
        a(f"v_mov_b32 v{PK+8+m}, 0x3f803f80")
    a("s_mov_b64 exec, -1")
    for m in range(2, 4):
        a(f"buffer_store_dwordx4 {vr(PK+4*m,4)}, v{V_L16}, s[{SKV}:{SKV+3}], s{S_A} offen offset:{1024*m} sc1")
    for m in range(2):
        a(f"ds_write_b128 v4, {vr(PK+4*m,4)} offset:{1024*m}")
    for r in range(16):
        a(f"v_mul_f32 v{ACCQ+r}, s{S_B}, v{ACCQ+r}")
    for m in range(8):
        a(f"v_cvt_pk_bf16_f32 v{PK+16+m}, v{ACCQ+2*m}, v{ACCQ+2*m+1}")
    a("s_mov_b32 exec_lo, 0")
    a(f"v_mov_b32 v{PK+16+6}, 0")
    a(f"v_mov_b32 v{PK+16+7}, 0")
    a("s_mov_b32 exec_lo, -1")
    a(f"ds_write_b128 v5, {vr(PK+16,4)}")
    a(f"ds_write_b128 v5, {vr(PK+20,4)} offset:1024")
    for m in range(2, 4):
        a(f"ds_write_b128 v4, {vr(PK+4*m,4)} offset:{1024*m}")
    a(f"v_add_u32 v4, {L_RING[0]}, v{V_L16}")
    a("s_waitcnt lgkmcnt(0)")
    a("s_barrier")
    lg.clear()

    Q = [8, 16]
    S = [24, 40]
    O = [56, 72]
    P = 88
    KR, VR = 96, 104
    a(f"ds_read_b128 {vr(KR,4)}, v4")
    a(f"ds_read_b128 {vr(Q[0],4)}, v{V_QR0}")
    a(f"ds_read_b128 {vr(Q[1],4)}, v{V_QR1}")
    a(f"ds_read_b128 {vr(KR+4,4)}, v4 offset:1024")
    a(f"ds_read_b128 {vr(Q[0]+4,4)}, v{V_QR0} offset:1024")
    a(f"ds_read_b128 {vr(Q[1]+4,4)}, v{V_QR1} offset:1024")
    a("s_waitcnt lgkmcnt(3)")
    for t in range(2):
        a(f"v_mfma_f32_32x32x16_bf16 {vr(S[t],16)}, {vr(KR,4)}, {vr(Q[t],4)}, 0")
    a("s_waitcnt lgkmcnt(0)")
    for t in range(2):
        a(f"v_mfma_f32_32x32x16_bf16 {vr(S[t],16)}, {vr(KR+4,4)}, {vr(Q[t]+4,4)}, {vr(S[t],16)}")
    a("s_barrier")
    a("s_waitcnt vmcnt(0)")
    a(f"s_mov_b32 s{S_SPIN}, {SPIN_MAX}")
    a.label("L_TAG")
    a(f"v_readfirstlane_b32 s{S_TAG}, v{V_TAGV}")
    a(f"v_readfirstlane_b32 s{S_TAG+1}, v{V_TAGV+1}")
    a(f"s_sub_u32 s{S_SPIN}, s{S_SPIN}, 1")
    a(f"s_cmp_eq_u32 s{S_SPIN}, 0")
    a("s_cbranch_scc1 L_TAG_OK")
    a(f"s_cmp_lg_u32 s{S_TAG}, 0")
    a("s_cbranch_scc1 L_TAG_OK")
    a("v_mov_b32 v4, 0")
    a(f"buffer_load_dwordx2 {vr(V_TAGV,2)}, v4, s[{SDBG}:{SDBG+3}], 0 offen sc1")
    a("s_waitcnt vmcnt(0)")
    a("s_branch L_TAG")
    a.label("L_TAG_OK")
    a("s_mov_b64 exec, 1")
    a(f"buffer_store_dwordx2 {vr(V_TAGV,2)}, v{V_FP}, s[{SWS}:{SWS+3}], 0 offen sc1")
    a("s_mov_b64 exec, -1")
    if "nop3" not in OPT:
        a(f"s_mov_b32 m0, s{S_WOM}")
        for q in range(4):
            a(f"s_sub_u32 s{S_T}, s{S_WOG}, {q*192}")
            a(f"buffer_load_dwordx4 v{V_WOD}, s[{SWO}:{SWO+3}], s{S_T} offen offset:{q*1088} lds")
        a(f"s_add_u32 s{S_WOG}, s{S_WOG}, s{S_WOX}")
        a(f"s_xor_b32 s{S_WOX}, s{S_WOX}, {(16*896) ^ (12*896)}")
    a("s_nop 3")
    for t in range(2):
        m = 4 + t
        a(f"v_max3_f32 v{m}, v{S[t]}, v{S[t]+1}, v{S[t]+2}")
        for r in range(3, 15, 2):
            a(f"v_max3_f32 v{m}, v{m}, v{S[t]+r}, v{S[t]+r+1}")
        a(f"v_max_f32 v{m}, v{m}, v{S[t]+15}")
    a.label("L_SETM")
    a(f"v_add_u32 v{V_CUR}, {L_RING[0]}, v{V_KP}")
    a(f"v_add_u32 v{V_NXT}, {L_RING[1]}, v{V_KP}")
    a("v_mov_b32 v6, v4")
    a("v_mov_b32 v7, v5")
    a(f"ds_read_b128 {vr(KR,4)}, v{V_CUR}")
    a(f"ds_read_b128 {vr(KR+4,4)}, v{V_CUR} offset:1024")
    a(f"ds_read_b128 {vr(VR,4)}, v{V_CUR} offset:2048")
    a("v_permlane32_swap_b32 v4, v6")
    a("v_permlane32_swap_b32 v5, v7")
    a(f"s_mov_b32 s{S_ST}, 0")
    a(f"s_mov_b32 s{S_CUR}, {L_RING[0]}")
    a(f"s_mov_b32 s{S_NXT}, {L_RING[1]}")
    a(f"s_mov_b32 s{S_PRV}, {L_RING[2]}")
    a("v_max_f32 v4, v4, v6")
    a("v_max_f32 v5, v5, v7")
    for t in range(2):
        m = 4 + t
        a(f"v_sub_f32 v{m}, 0, v{m}")
        a(f"v_and_b32 v6, 0xffff0000, v{m}")
        a(f"v_sub_f32 v{m}, v{m}, v6")
        a(f"v_and_b32 v7, 0xffff0000, v{m}")
        a(f"v_sub_f32 v{m}, v{m}, v7")
        a("v_lshrrev_b32 v6, 16, v6")
        a("s_mov_b32 exec_lo, 0")
        a(f"v_or_b32 v{Q[t]+6}, v6, v7")
        a(f"v_lshrrev_b32 v{Q[t]+7}, 16, v{m}")
        a("s_mov_b32 exec_lo, -1")
    a("s_waitcnt lgkmcnt(0)")
    a(f"v_mfma_f32_32x32x16_bf16 {vr(S[0],16)}, {vr(KR,4)}, {vr(Q[0],4)}, 0")
    a(f"v_mfma_f32_32x32x16_bf16 {vr(S[0],16)}, {vr(KR+4,4)}, {vr(Q[0]+4,4)}, {vr(S[0],16)}")
    for t in range(2):
        for r in range(16):
            a(f"v_mov_b32 v{O[t]+r}, 0")
    for r in range(4):
        a(f"v_mov_b32 v{P+4+r}, 0")
        a(f"v_mov_b32 v{VR+4+r}, 0")
    stamp(a, 5)
    a(f"s_cmp_lg_u32 s{S_FB}, 0")
    a("s_cbranch_scc1 L_LOOP")
    S_D1 = 49
    a(f"s_mov_b32 s{S_D1}, 0")
    a(f"buffer_load_dwordx2 {vr(V_POLL,2)}, v{V_FP}, s[{SWS}:{SWS+3}], 0 offen sc1")

    def poll_eval():
        a("s_waitcnt vmcnt(0)")
        a(f"v_cmp_eq_u64 vcc, s[{S_TAG}:{S_TAG+1}], {vr(V_POLL,2)}")
        a("s_nop 3")
        a(f"s_and_b32 s{S_RDY}, vcc_lo, 0xff")
    def poll_until(label):
        a(f"s_mov_b32 s{S_SPIN}, {SPIN_MAX}")
        a.label(label)
        a(f"s_bitcmp1_b32 s{S_RDY}, s{S_C}")
        a(f"s_cbranch_scc1 {label}_OK")
        a(f"buffer_load_dwordx2 {vr(V_POLL,2)}, v{V_FP}, s[{SWS}:{SWS+3}], 0 offen sc1")
        a(f"s_sub_u32 s{S_SPIN}, s{S_SPIN}, 1")
        poll_eval()
        a(f"s_cmp_lg_u32 s{S_SPIN}, 0")
        a(f"s_cbranch_scc1 {label}")
        a.label(label + "_OK")

    def kv_dma(slot_sgpr):
        a(f"s_add_u32 s{S_A}, s{S_QB}, s{S_C}")
        a(f"s_and_b32 s{S_A}, s{S_A}, 7")
        a(f"s_add_u32 m0, s{slot_sgpr}, s{S_W4K}")
        a(f"s_lshl_b32 s{S_A}, s{S_A}, 15")
        for i in range(4):
            a(f"buffer_load_dwordx4 v{V_DM}, s[{SKV}:{SKV+3}], s{S_A} offen offset:{i*1024} sc1 lds")

    def wo_dma():
        a(f"s_mov_b32 m0, s{S_WOM}")
        for q in range(4):
            a(f"s_sub_u32 s{S_T}, s{S_WOG}, {q*192}")
            if "nowd" not in OPT:
                a(f"buffer_load_dwordx4 v{V_WOD}, s[{SWO}:{SWO+3}], s{S_T} offen offset:{q*1088} lds")
        a(f"s_add_u32 s{S_WOG}, s{S_WOG}, s{S_WOX}")
        a(f"s_xor_b32 s{S_WOX}, s{S_WOX}, {(16*896) ^ (12*896)}")

    def wo_read(c):
        for f in range(4 if "nowr" not in OPT else 0):
            d = (c * 4 + f) * 4
            a(f"ds_read_b64_tr_b16 {ar(d,2)}, v{V_WOR} offset:{f*64}")
            a(f"ds_read_b64_tr_b16 {ar(d+2,2)}, v{V_WOR} offset:{f*64 + 512}")

    def stage(first):
        sfx = "F" if first else "L"
        for u in range(8):
            n, T = u >> 1, u & 1
            Sc, Sn = S[T], S[1 - T]
            def E(i):
                a(f"v_exp_f32 v{Sc+i}, v{Sc+i}")
            def C(i):
                a(f"v_cvt_pk_bf16_f32 v{P+i}, v{Sc+2*i}, v{Sc+2*i+1}")
            def addr(nn):
                return (V_CUR, nn * 8192) if nn < 4 else (V_NXT, 0)
            if u == 6:
                a("s_waitcnt vmcnt(0) lgkmcnt(0)")
                a("s_barrier")
            elif T == 1:
                a("s_waitcnt lgkmcnt(2)")
            if T == 0 and "noprio" not in OPT:
                a(f"s_setprio {3 - ((u + 2) % 8) // 2}")
            a(f"v_mfma_f32_32x32x16_bf16 {vr(Sn,16)}, {vr(KR,4)}, {vr(Q[1-T],4)}, 0")
            if T == 0:
                va, off = addr(n + 1)
                a(f"ds_read_b128 {vr(KR,4)}, v{va} offset:{off}")
            E(0); E(1); E(2); E(3)
            if T == 1:
                a("s_waitcnt lgkmcnt(1)")
            a(f"v_mfma_f32_32x32x16_bf16 {vr(O[1-T],16)}, {vr(VR+4,4)}, {vr(P+4,4)}, {vr(O[1-T],16)}")
            if T == 0:
                va, off = addr(n)
                a(f"ds_read_b128 {vr(VR+4,4)}, v{va} offset:{off+3072}")
            C(0); C(1)
            E(4); E(5); E(6)
            if T == 1:
                a("s_waitcnt lgkmcnt(0)")
            a(f"v_mfma_f32_32x32x16_bf16 {vr(Sn,16)}, {vr(KR+4,4)}, {vr(Q[1-T]+4,4)}, {vr(Sn,16)}")
            if T == 0:
                va, off = addr(n + 1)
                a(f"ds_read_b128 {vr(KR+4,4)}, v{va} offset:{off+1024}")
            E(7); C(2); C(3)
            if u == 7 and "nop3" not in OPT and "nosel" not in OPT:
                if first:
                    wo_read(0)
                else:
                    a(f"s_cmp_eq_u32 s{S_FB}, 0")
                    a("s_cbranch_scc1 L_WOSEL")
                    a.label("L_WORET")
            E(8); E(9); E(10)
            if T == 0:
                a("s_waitcnt lgkmcnt(3)")
            a(f"v_mfma_f32_32x32x16_bf16 {vr(O[T],16)}, {vr(VR,4)}, {vr(P,4)}, {vr(O[T],16)}")
            if T == 1:
                va, off = addr(n + 1)
                a(f"ds_read_b128 {vr(VR,4)}, v{va} offset:{off+2048}")
            E(11); C(4); C(5)
            if first and u in (1, 3, 5):
                a(f"s_cmp_lg_u32 s{S_D1}, 0")
                a(f"s_cbranch_scc1 L_CK{u}")
                poll_eval()
                a(f"s_mov_b32 s{S_C}, 1")
                if u == 5:
                    poll_until("L_P1")
                else:
                    a(f"s_bitcmp1_b32 s{S_RDY}, 1")
                    a(f"s_cbranch_scc1 L_GO{u}")
                    a(f"buffer_load_dwordx2 {vr(V_POLL,2)}, v{V_FP}, s[{SWS}:{SWS+3}], 0 offen sc1")
                    a(f"s_branch L_CK{u}")
                    a.label(f"L_GO{u}")
                kv_dma(S_NXT)
                a(f"s_mov_b32 s{S_D1}, 1")
                a.label(f"L_CK{u}")
            WU = (0, 1)
            if u in WU and not first and "nop3" not in OPT:
                a(f"s_add_u32 s{S_T}, s{S_KPS}, s{S_FB}")
                a(f"s_cmp_lg_u32 s{S_T}, {WU.index(u)}")
                a(f"s_cbranch_scc1 L_WOD{u}{sfx}")
                wo_dma()
                a.label(f"L_WOD{u}{sfx}")
            if u in (6, 7):
                a(f"s_add_u32 s{S_C}, s{S_ST}, 2")
                a(f"s_cmp_lg_u32 s{S_KPS}, {u - 6}")
                a(f"s_cbranch_scc1 L_NODMA{u}{sfx}")
                a(f"s_cmp_ge_u32 s{S_C}, 8")
                a(f"s_cbranch_scc1 L_NODMA{u}{sfx}")
                poll_until(f"L_P2{u}{sfx}")
                kv_dma(S_PRV)
                a.label(f"L_NODMA{u}{sfx}")
            if u == 7:
                a(f"s_mov_b32 s{S_T}, s{S_CUR}")
                a(f"s_mov_b32 s{S_CUR}, s{S_NXT}")
                a(f"s_mov_b32 s{S_NXT}, s{S_PRV}")
                a(f"s_mov_b32 s{S_PRV}, s{S_T}")
                a(f"v_add_u32 v{V_CUR}, s{S_CUR}, v{V_KP}")
                a(f"v_add_u32 v{V_NXT}, s{S_NXT}, v{V_KP}")
                a(f"s_add_u32 s{S_ST}, s{S_ST}, 1")
                a(f"s_cmp_lt_u32 s{S_ST}, 8")
            E(12); E(13); E(14); E(15); C(6); C(7)

    stage(True)
    stamp(a, 6)
    dbgt(a, 9)
    a.raw(".p2align 6")
    a.label("L_LOOP")
    stage(False)
    a("s_cbranch_scc1 L_LOOP")
    stamp(a, 7)
    dbgt(a, 7)
    GX, GW = S[1], KR
    a(f"s_lshr_b32 s{S_C}, s{S_HH}, 2")
    a(f"v_mfma_f32_32x32x16_bf16 {vr(O[1],16)}, {vr(VR+4,4)}, {vr(P+4,4)}, {vr(O[1],16)}")
    a(f"s_lshl_b32 s{S_A}, s{S_QB}, 3")
    a(f"s_add_u32 s{S_C}, s{S_C}, s{S_A}")
    a(f"s_lshl_b32 s{S_A}, s{S_C}, 3")
    a(f"s_add_u32 s{S_A}, s{S_A}, s{S_W}")
    a(f"s_mul_i32 s{S_A}, s{S_A}, {4*896}")
    a(f"v_lshrrev_b32 v6, 4, v{V_LANE}")
    a("v_mul_u32_u24 v6, 896, v6")
    a(f"v_and_b32 v7, 15, v{V_LANE}")
    a("v_lshlrev_b32 v7, 4, v7")
    a("v_add_u32 v6, v6, v7")
    a("s_waitcnt lgkmcnt(0)")
    for q in range(4):
        a(f"buffer_load_dwordx4 {vr(GX+4*q,4)}, v6, s[{SX}:{SX+3}], s{S_A} offen offset:{q*256}")
    for q in range(4):
        a(f"buffer_load_dwordx4 {vr(GW+4*q,4)}, v7, s[{SG}:{SG+3}], 0 offen offset:{q*256}")
    a(f"s_xor_b32 s{S_A}, s{S_W4K}, {4*4096}")
    a(f"s_add_u32 s{S_A}, s{S_A}, {L_RED}")
    a(f"v_add_u32 v4, s{S_A}, v{V_L16}")
    a(f"v_add_u32 v5, s{S_XA}, v{V_L16}")
    for q in range(4):
        a(f"ds_write_b128 v4, {vr(O[1]+4*q,4)} offset:{q*1024}")
    a(f"v_mov_b32 v6, {f32hex(2.0**39)}")
    a(f"v_max_f32 v7, v{O[0]+12}, v{O[1]+12}")
    a(f"v_add_f32 v4, v{O[0]+12}, v{O[1]+12}")
    a("v_cmp_nlt_f32 vcc, v7, v6")
    a(f"v_cmp_u_f32 s[{S_A}:{S_A+1}], v4, v4")
    a(f"v_mov_b32 v6, {L_FB}")
    a("v_mov_b32 v7, 1")
    a("s_nop 1")
    a(f"s_or_b32 s{S_A}, vcc_hi, s{S_A+1}")
    a("s_cbranch_scc0 L_NOVOTE")
    a("ds_write_b32 v6, v7")
    a.label("L_NOVOTE")
    a("s_waitcnt lgkmcnt(0)")
    a("s_barrier")
    a("ds_read_b32 v7, v6")
    for q in range(4):
        a(f"ds_read_b128 {vr(S[0]+4*q,4)}, v5 offset:{q*1024}")
    a(f"s_cmp_lg_u32 s{S_FB}, 0")
    a("s_cbranch_scc1 L_FIN")
    a("s_waitcnt lgkmcnt(4)")
    a(f"v_readfirstlane_b32 s{S_A}, v7")
    a("s_nop 3")
    a(f"s_cmp_lg_u32 s{S_A}, 0")
    a("s_cbranch_scc1 L_FALLBACK")
    a.label("L_FIN")
    a("s_waitcnt lgkmcnt(0)")
    for r in range(16):
        a(f"v_add_f32 v{O[0]+r}, v{O[0]+r}, v{S[0]+r}")
    a(f"v_mov_b32 v4, v{O[0]+12}")
    a(f"v_mov_b32 v5, v{O[0]+12}")
    a(f"s_lshl_b32 s{S_A}, s{S_QB}, 3")
    a(f"s_add_u32 s{S_A}, s{S_A}, s{S_T0}")
    a("v_permlane32_swap_b32 v4, v5")
    a(f"s_lshl_b32 s{S_A}, s{S_A}, 5")
    a(f"s_add_u32 s{S_A}, s{S_A}, s{S_HH}")
    a("v_rcp_f32 v4, v5")
    a(f"s_lshl_b32 s{S_B}, s{S_A}, 11")
    a(f"s_add_u32 s{S_B}, s{S_B}, {OF_BASE}")
    for r in range(8):
        a(f"v_mul_f32 v{O[0]+r}, v{O[0]+r}, v4")
    for m in range(4):
        a(f"v_cvt_pk_bf16_f32 v{P+m}, v{O[0]+2*m}, v{O[0]+2*m+1}")
    a(f"buffer_store_dwordx4 {vr(P,4)}, v{V_L16}, s[{SWS}:{SWS+3}], s{S_B} offen sc1")
    for r in range(8, 16):
        a(f"v_mul_f32 v{O[0]+r}, v{O[0]+r}, v4")
    for m in range(4, 8):
        a(f"v_cvt_pk_bf16_f32 v{P+m}, v{O[0]+2*m}, v{O[0]+2*m+1}")
    a("s_mov_b32 exec_lo, 0")
    a(f"v_mov_b32 v{P+6}, 0")
    a(f"v_mov_b32 v{P+7}, 0")
    a("s_mov_b32 exec_lo, -1")
    a(f"buffer_store_dwordx4 {vr(P+4,4)}, v{V_L16}, s[{SWS}:{SWS+3}], s{S_B} offen offset:1024 sc1")
    stamp(a, 8)
    if "nop3" not in OPT:
        a(f"s_lshl_b32 s{S_B}, s{S_A}, 3")
        a(f"s_add_u32 s{S_B}, s{S_B}, {F3_BASE}")
        a(f"s_lshl_b32 s{S_A}, s{S_C}, 5")
        a(f"s_lshl_b32 s{S_T}, s{S_W}, 2")
        a(f"s_add_u32 s{S_A}, s{S_A}, s{S_T}")
        a(f"s_lshl_b32 s{S_T}, s{S_A}, 3")
        a(f"s_add_u32 s{S_T}, s{S_T}, {F3_BASE}")
        a(f"v_and_b32 v7, 3, v{V_LANE}")
        a(f"v_lshl_add_u32 v{V_FP}, v7, 3, s{S_T}")
        a(f"s_lshl_b32 s{S_A}, s{S_A}, 11")
        a(f"s_add_u32 s{S_A}, s{S_A}, {OF_BASE}")
        a("v_mov_b32 v4, 0")
        a("v_mov_b32 v5, 0")
        a("s_waitcnt vmcnt(2)")
        for d in range(0, 16, 2):
            a(f"v_dot2c_f32_bf16 v4, v{GX+d}, v{GW+d}")
            a(f"v_dot2c_f32_bf16 v5, v{GX+d+1}, v{GW+d+1}")
        a(f"v_lshrrev_b32 v6, 4, v{V_LANE}")
        a("v_lshlrev_b32 v6, 2, v6")
        a(f"s_lshl_b32 s{S_T}, s{S_W}, 4")
        a(f"s_add_u32 s{S_T}, s{S_T}, {L_GV}")
        a("v_add_f32 v4, v4, v5")
        a(f"v_add_u32 v6, s{S_T}, v6")
        for sh in (8, 4, 2, 1):
            a("s_nop 1")
            a(f"v_add_f32_dpp v4, v4, v4 row_ror:{sh} row_mask:0xf bank_mask:0xf")
        a(f"v_mul_f32 v4, {f32hex(-math.log2(math.e))}, v4")
        a("v_exp_f32 v4, v4")
        a("v_mov_b32 v7, 0")
        a("v_add_f32 v4, 1.0, v4")
        a("v_rcp_f32 v4, v4")
        a("s_nop 0")
        a("ds_write_b32 v6, v4")
        a("s_waitcnt vmcnt(0)")
        a("s_mov_b64 exec, 1")
        a(f"buffer_store_dwordx2 {vr(V_TAGV,2)}, v7, s[{SWS}:{SWS+3}], s{S_B} offen sc1")
        a("s_mov_b64 exec, -1")
        a("s_waitcnt lgkmcnt(0)")
        a("s_barrier")
        ACC = 8
        OFR = 72
        a(f"v_and_b32 v5, 31, v{V_LANE}")
        a("v_lshlrev_b32 v104, 2, v5")
        a(f"v_add_u32 v104, {L_GV}, v104")
        a("ds_read_b32 v105, v104")
        a(f"s_lshl_b32 s{S_T}, s{S_C}, 5")
        a(f"v_add_u32 v5, s{S_T}, v5")
        a("v_mul_u32_u24 v5, 896, v5")
        a(f"v_lshrrev_b32 v6, 5, v{V_LANE}")
        a("v_lshl_add_u32 v107, v6, 3, v5")
        a(f"s_lshl_b32 s{S_B}, s{S_FT0}, 6")
        a(f"s_lshl_b32 s{S_T}, s{S_W}, 5")
        a(f"s_add_u32 s{S_B}, s{S_B}, s{S_T}")
        a(f"s_and_b32 s{S_C}, s{S_HH}, 2")
        a(f"s_lshr_b32 s{S_T}, s{S_W}, 1")
        a(f"s_add_u32 s{S_C}, s{S_C}, s{S_T}")
        a(f"s_cmp_eq_u32 s{S_C}, 5")
        a(f"s_cselect_b32 s{S_C}, {OOB}, s{S_B}")
        a(f"s_lshl_b32 s{S_T}, s{S_W}, 11")
        a(f"v_add_u32 v108, s{S_T}, v{V_L16}")
        a(f"v_add_u32 v109, 0x10000, v108")
        a(f"s_lshl_b32 s{S_T}, s{S_W}, 14")
        a(f"v_add_u32 v110, s{S_T}, v{V_L16}")
        a(f"s_mov_b32 s{S_SPIN}, {SPIN_MAX}")
        a.label("L_P3")
        a(f"buffer_load_dwordx2 {vr(V_POLL,2)}, v{V_FP}, s[{SWS}:{SWS+3}], 0 offen sc1")
        a(f"s_sub_u32 s{S_SPIN}, s{S_SPIN}, 1")
        a(f"s_cmp_eq_u32 s{S_SPIN}, 0")
        a("s_cbranch_scc1 L_P3_OK")
        a("s_waitcnt vmcnt(0)")
        a(f"v_cmp_eq_u64 vcc, s[{S_TAG}:{S_TAG+1}], {vr(V_POLL,2)}")
        a("s_nop 3")
        a("s_cmp_eq_u64 vcc, -1")
        a("s_cbranch_scc0 L_P3")
        a.label("L_P3_OK")
        stamp(a, 9)
        a(f"s_add_u32 s{S_B}, s{S_A}, 4096")
        for i in range(8):
            a(f"buffer_load_dwordx4 {vr(OFR+4*i,4)}, v{V_L16}, s[{SWS}:{SWS+3}], s{S_A if i < 4 else S_B} offen offset:{(i&3)*1024} sc1")
        for i in range(8):
            a(f"s_waitcnt vmcnt({7-i})")
            for f in range(4):
                c = "0" if i == 0 else vr(ACC + 16*f, 16)
                a(f"v_mfma_f32_32x32x16_bf16 {vr(ACC+16*f,16)}, {ar((i*4+f)*4,4)}, {vr(OFR+4*i,4)}, {c}")
        stamp(a, 10)
        a("s_waitcnt lgkmcnt(0)")
        a("v_sub_f32 v106, 1.0, v105")
        a("s_nop 7")
        for d in range(8):
            va = 108 if d < 4 else 109
            for q in range(2):
                a(f"ds_write_b128 v{va}, {vr(ACC + 8*d + 4*q, 4)} offset:{L_R3 + (d&3)*16384 + q*1024}")
        a("s_waitcnt lgkmcnt(0)")
        a("s_barrier")
        for src in range(8):
            for q in range(2):
                a(f"ds_read_b128 {vr(ACC + 8*src + 4*q, 4)}, v110 offset:{L_R3 + src*2048 + q*1024}")
        for br in range(2):
            b0 = ACC + 32 * br
            a(f"s_waitcnt lgkmcnt({12 - 8*br})")
            for r in range(8):
                a(f"v_add_f32 v{b0+r}, v{b0+r}, v{b0+8+r}")
            a(f"s_waitcnt lgkmcnt({8 - 8*br})")
            for r in range(8):
                a(f"v_add_f32 v{b0+16+r}, v{b0+16+r}, v{b0+24+r}")
            for r in range(8):
                a(f"v_add_f32 v{b0+r}, v{b0+r}, v{b0+16+r}")
        for r in range(8):
            a(f"v_mul_f32 v{ACC+r}, v{ACC+r}, v105")
        for r in range(8):
            a(f"v_fmac_f32 v{ACC+r}, v{ACC+32+r}, v106")
        for m in range(4):
            a(f"v_cvt_pk_bf16_f32 v{OFR+m}, v{ACC+2*m}, v{ACC+2*m+1}")
        a(f"buffer_store_dwordx2 {vr(OFR,2)}, v107, s[{SOUT}:{SOUT+3}], s{S_C} offen")
        a(f"buffer_store_dwordx2 {vr(OFR+2,2)}, v107, s[{SOUT}:{SOUT+3}], s{S_C} offen offset:16")
    if "dbgt" in OPT: a("s_waitcnt vmcnt(0)")
    dbgt(a, 8)
    stamp_flush(a, 11 if "nop3" not in OPT else 9, S_W)
    a.label("L_END")
    a("s_endpgm")

    if "nop3" not in OPT and "nosel" not in OPT:
        a.label("L_WOSEL")
        for c in range(1, 7):
            a(f"s_cmp_eq_u32 s{S_ST}, {c}")
            a(f"s_cbranch_scc1 L_WOR{c}")
        for c in (7, 1, 2, 3, 4, 5, 6):
            a.label(f"L_WOR{c}")
            wo_read(c)
            a("s_branch L_WORET")

    a.label("L_FALLBACK")
    a(f"s_mov_b32 s{S_FB}, 64")
    a("s_mov_b32 exec_lo, 0")
    for t in range(2):
        a(f"v_mov_b32 v{Q[t]+6}, 0")
        a(f"v_mov_b32 v{Q[t]+7}, 0")
    a("s_mov_b32 exec_lo, -1")
    a("v_mov_b32 v4, 0xff800000")
    a("v_mov_b32 v5, 0xff800000")
    a(f"s_mov_b32 s{S_A}, 0")
    a("s_waitcnt vmcnt(0) lgkmcnt(0)")
    a("s_barrier")
    a.label("L_FBMAX")
    a(f"buffer_load_dwordx4 {vr(KR,4)}, v{V_L16}, s[{SKV}:{SKV+3}], s{S_A} offen sc1")
    a(f"buffer_load_dwordx4 {vr(KR+4,4)}, v{V_L16}, s[{SKV}:{SKV+3}], s{S_A} offen offset:1024 sc1")
    a("s_waitcnt vmcnt(0)")
    for t in range(2):
        a(f"v_mfma_f32_32x32x16_bf16 {vr(S[t],16)}, {vr(KR,4)}, {vr(Q[t],4)}, 0")
        a(f"v_mfma_f32_32x32x16_bf16 {vr(S[t],16)}, {vr(KR+4,4)}, {vr(Q[t]+4,4)}, {vr(S[t],16)}")
    a("s_nop 15")
    for t in range(2):
        for r in range(0, 16, 2):
            a(f"v_max3_f32 v{4+t}, v{4+t}, v{S[t]+r}, v{S[t]+r+1}")
    a(f"s_add_u32 s{S_A}, s{S_A}, 4096")
    a(f"s_cmp_lt_u32 s{S_A}, 262144")
    a("s_cbranch_scc1 L_FBMAX")
    a(f"s_mov_b32 s{S_CUR}, {L_RING[0]}")
    a(f"s_mov_b32 s{S_NXT}, {L_RING[1]}")
    a(f"s_mov_b32 s{S_C}, 0")
    kv_dma(S_CUR)
    a(f"s_mov_b32 s{S_C}, 1")
    kv_dma(S_NXT)
    a("s_waitcnt vmcnt(4)")
    a("s_barrier")
    a("s_branch L_SETM")

    nsg = 102 if STAMP else 80
    return a.text() + f"""
.section .rodata,"a"
.p2align 6
.amdhsa_kernel {KNAME}
  .amdhsa_next_free_vgpr 256
  .amdhsa_next_free_sgpr {nsg}
  .amdhsa_accum_offset 128
  .amdhsa_group_segment_fixed_size 0
  .amdhsa_kernarg_size 80
  .amdhsa_user_sgpr_count 2
  .amdhsa_user_sgpr_kernarg_segment_ptr 1
  .amdhsa_system_sgpr_workgroup_id_x 1
.end_amdhsa_kernel
"""

def main():
    global STAMP
    if len(sys.argv) > 2 and sys.argv[2] == "stamp": STAMP = True
    OPT.update(sys.argv[3:])
    hdr = open("cdna_kernels/" + NAME + ".s.ref").read().split("\n")
    top = [l for l in hdr if l.startswith(";") and "@launch" not in l and "Override" not in l and "grid=ceil" not in l]
    out = "\n".join(top[:11]) + "\n"
    out += f"; @launch grid=(256,1,1) block=(512,1,1) lds={LDS_BYTES}\n"
    out += '.amdgcn_target "amdgcn-amd-amdhsa--gfx950"\n'
    out += gen()
    path = sys.argv[1] if len(sys.argv) > 1 else "cdna_kernels/" + NAME + ".s"
    open(path, "w").write(out)

if __name__ == "__main__":
    main()
```

```python
import struct, sys, math

NAME = "gated_mix__softmax_full_mha__softmax_full_mha__prompt"
KNAME = NAME + "_kernel"

def f32hex(x):
    return "0x%08x" % struct.unpack("<I", struct.pack("<f", x))[0]

class Asm:
    def __init__(self):
        self.lines = []
    def __call__(self, s):
        for ln in s.strip("\n").split("\n"):
            self.lines.append("    " + ln.strip())
    def label(self, l):
        self.lines.append(l + ":")
    def raw(self, s):
        self.lines.append(s)
    def text(self):
        return "\n".join(self.lines) + "\n"

class Cnt:
    def __init__(self):
        self.q = []
    def issue(self, tag, n=1):
        for _ in range(n):
            self.q.append(tag)
    def need(self, *tags):
        idx = -1
        for i, t in enumerate(self.q):
            if t in tags:
                idx = i
        if idx < 0:
            return None
        n = len(self.q) - 1 - idx
        self.q = self.q[idx + 1:]
        return n
    def clear(self):
        self.q = []

def vr(lo, n):
    return f"v[{lo}:{lo+n-1}]"
def ar(lo, n):
    return f"a[{lo}:{lo+n-1}]"

KV_BASE = 0
OF_BASE = 8 << 20
F2_BASE = 12 << 20
F3_BASE = (12 << 20) + (64 << 10)
WS_SIZE = 13 << 20
X_BYTES = 2048 * 448 * 2
W_BYTES = 448 * 1344 * 2
WO_BYTES = 448 * 448 * 2
OUT_BYTES = 2048 * 448 * 2
OOB = 0x40000000
QSCALE = math.log2(math.e) / math.sqrt(28.0)
SPIN_MAX = 200000

L_W = 0
L_XB = 86016
L_XA = 126976
L_RING = [L_XA, 0, 32768]
L_WO = 65536
L_R3 = 0
L_RED = L_XA
L_FB = L_XA + 32768
L_GV = L_FB + 64
LDS_BYTES = L_GV + 128

STAMP = False
OPT = set()
STAMP_BASE = 64 << 20
STR = [78 + 2*i for i in range(12)] + [36, 38, 40, 42]
def dbgt(a, slot):
    if "dbgt" not in OPT: return
    a(f"s_memrealtime s[{80+2*slot}:{81+2*slot}]")
def dbgt_flush(a, s_w):
    if "dbgt" not in OPT: return
    a("s_waitcnt vmcnt(0)")
    dbgt(a, 5)
    a("s_waitcnt lgkmcnt(0)")
    a("s_lshl_b32 s78, s2, 3")
    a(f"s_add_u32 s78, s78, s{s_w}")
    a("s_mov_b32 s79, 0x40000000")
    a("s_cmp_eq_u32 s78, 40")
    a("s_cselect_b32 s79, 16, s79")
    a("s_cmp_eq_u32 s78, 1607")
    a("s_cselect_b32 s79, 40, s79")
    a("v_mov_b32 v1, 0")
    a("s_mov_b64 exec, 1")
    for i in range(6):
        a(f"v_mov_b32 v2, s{80+2*i}")
        a(f"buffer_store_dword v2, v1, s[32:35], s79 offen offset:{4*i}")
def pstamp(a, i):
    if STAMP and "pst" in OPT:
        a(f"s_memtime s[{STR[i]}:{STR[i]+1}]")
def stamp(a, i, real=False):
    if not STAMP: return
    if "pst" in OPT and i >= 2: return
    a(f"{'s_memrealtime' if real else 's_memtime'} s[{STR[i]}:{STR[i]+1}]")
def stamp_flush(a, n, s_w):
    if not STAMP: return
    a("s_waitcnt vmcnt(0) lgkmcnt(0)")
    a(f"s_memtime s[{STR[n]}:{STR[n]+1}]")
    a(f"s_memrealtime s[{STR[n+1]}:{STR[n+1]+1}]")
    a("s_waitcnt lgkmcnt(0)")
    a("s_mov_b32 s14, 0x10000000")
    a("s_lshl_b32 s59, s2, 3")
    a(f"s_add_u32 s59, s59, s{s_w}")
    a("s_lshl_b32 s59, s59, 7")
    a(f"s_add_u32 s59, s59, {STAMP_BASE}")
    a("v_mov_b32 v1, 0")
    a("s_mov_b64 exec, 1")
    a("s_getreg_b32 s60, hwreg(HW_REG_XCC_ID)")
    a("v_mov_b32 v2, s60")
    a("v_mov_b32 v3, 0")
    a("buffer_store_dwordx2 v[2:3], v1, s[12:15], s59 offen offset:120")
    for i in range(n + 2):
        a(f"v_mov_b32 v2, s{STR[i]}")
        a(f"v_mov_b32 v3, s{STR[i]+1}")
        a(f"buffer_store_dwordx2 v[2:3], v1, s[12:15], s59 offen offset:{8*i}")
        a("s_nop 1")

def srd(a, d, lo, hi, nbytes):
    a(f"s_mov_b32 s{d}, s{lo}")
    a(f"s_mov_b32 s{d+1}, s{hi}")
    a(f"s_mov_b32 s{d+2}, {nbytes}")
    a(f"s_mov_b32 s{d+3}, 0x00020000")

def gen():
    a = Asm()
    a.raw(".text")
    a.raw(f".globl {KNAME}")
    a.raw(".p2align 8")
    a.raw(f".type {KNAME},@function")
    a.label(KNAME)
    SX, SW, SWS, SWO, SG, SKV, SOUT, SDBG = 4, 8, 12, 16, 20, 24, 28, 32
    S_HH, S_QB, S_W, S_T, S_TT, S_R = 56, 57, 58, 59, 60, 61
    S_A, S_B, S_C = 62, 63, 64
    S_XA, S_XB = 65, 66
    S_TAG = 68
    S_RDY = 70
    S_ST, S_CUR, S_NXT, S_PRV = 71, 72, 73, 74
    S_SPIN = 75
    S_W4K = 76
    S_FB = 77
    V_LANE, V_L16 = 2, 3
    a("s_cmp_ge_u32 s2, 256")
    a("s_cbranch_scc1 L_END")
    stamp(a, 0); stamp(a, 1, True); dbgt(a, 0)
    a("s_load_dwordx16 s[36:51], s[0:1], 0")
    a("s_load_dwordx4 s[52:55], s[0:1], 64")
    a(f"s_memrealtime s[{S_TAG}:{S_TAG+1}]")
    LH = 3 if "map2" in OPT else 2 if "map1" in OPT else 5 if "map4" in OPT else 4
    a(f"s_and_b32 s{S_T}, s2, 7")
    a(f"s_lshr_b32 s{S_A}, s2, 3")
    a(f"s_and_b32 s{S_HH}, s{S_T}, {(32 >> LH) - 1}")
    a(f"s_lshl_b32 s{S_HH}, s{S_HH}, {LH}")
    a(f"s_and_b32 s{S_B}, s{S_A}, {(1 << LH) - 1}")
    a(f"s_add_u32 s{S_HH}, s{S_HH}, s{S_B}")
    a(f"s_lshr_b32 s{S_QB}, s{S_T}, {5 - LH}")
    a(f"s_lshl_b32 s{S_QB}, s{S_QB}, {5 - LH}")
    a(f"s_lshr_b32 s{S_A}, s{S_A}, {LH}")
    a(f"s_add_u32 s{S_QB}, s{S_QB}, s{S_A}")
    if LH == 2:
        a(f"s_lshl_b32 s{S_B}, s{S_B}, 1")
    else:
        a(f"s_and_b32 s{S_B}, s{S_B}, 7")
        a(f"s_lshl_b32 s{S_A}, s{S_A}, 1")
    a(f"s_add_u32 s{S_R}, s{S_A}, s{S_B}")
    a(f"s_add_u32 s{S_R}, s{S_R}, s{S_T}")
    a(f"s_mul_i32 s{S_A}, s{S_R}, 37")
    a(f"s_lshr_b32 s{S_A}, s{S_A}, 8")
    a(f"s_mul_i32 s{S_A}, s{S_A}, 7")
    a(f"s_sub_u32 s{S_R}, s{S_R}, s{S_A}")
    if "norot" in OPT: a(f"s_mov_b32 s{S_R}, 0")
    a("v_lshrrev_b32 v1, 6, v0")
    a(f"v_and_b32 v{V_LANE}, 63, v0")
    a(f"v_readfirstlane_b32 s{S_W}, v1")
    a(f"v_lshlrev_b32 v{V_L16}, 4, v{V_LANE}")
    a(f"s_lshl_b32 s{S_TT}, s{S_QB}, 3")
    a("s_nop 2")
    a(f"s_add_u32 s{S_TT}, s{S_TT}, s{S_W}")
    a(f"s_lshl_b32 s{S_W4K}, s{S_W}, 12")
    a(f"s_add_u32 s{S_XA}, s{S_W4K}, {L_XA}")
    a(f"s_add_u32 s{S_XB}, s{S_W4K}, {L_XB}")

    ACCQ, ACCK, ACCV = 16, 32, 48
    XF = 64
    V_XD, V_XR, V_WD, V_WR = 96, 100, 104, 105
    V_CUR, V_NXT, V_DM, V_FP, V_WOD, V_WOR, V_TAGV, V_KP, V_QR0, V_QR1, V_POLL = 112, 113, 114, 115, 116, 117, 118, 120, 121, 122, 124
    a(f"v_lshrrev_b32 v4, 3, v{V_LANE}")
    a(f"v_and_b32 v5, 7, v{V_LANE}")
    a(f"s_lshl_b32 s{S_T}, s{S_TT}, 5")
    a(f"v_add_u32 v6, s{S_T}, v4")
    a("v_mul_u32_u24 v6, 896, v6")
    a("v_lshrrev_b32 v7, 1, v4")
    a("v_xor_b32 v8, v7, v5")
    a("v_or_b32 v7, 4, v7")
    a("v_xor_b32 v7, v7, v5")
    a(f"v_lshl_add_u32 v{V_XD}, v8, 4, v6")
    a("v_lshl_add_u32 v7, v7, 4, v6")
    a(f"v_add_u32 v{V_XD+1}, {8*896 - 1024}, v7")
    a(f"v_add_u32 v{V_XD+2}, {16*896 - 2048}, v{V_XD}")
    a(f"v_add_u32 v{V_XD+3}, {24*896 - 3072}, v7")
    a(f"v_mul_u32_u24 v5, 43, v{V_LANE}")
    a("v_lshrrev_b32 v5, 9, v5")
    a("v_mul_u32_u24 v6, 12, v5")
    a(f"v_sub_u32 v6, v{V_LANE}, v6")
    a("v_lshl_add_u32 v5, v1, 3, v5")
    a("v_mul_u32_u24 v5, 2688, v5")
    a("v_lshrrev_b32 v7, 2, v6")
    a("v_mul_u32_u24 v7, 896, v7")
    a("v_add_u32 v5, v5, v7")
    a("v_and_b32 v6, 3, v6")
    a("v_lshl_add_u32 v5, v6, 4, v5")
    a(f"s_and_b32 s{S_T}, s{S_HH}, 15")
    a(f"s_mul_i32 s{S_T}, s{S_T}, 56")
    a(f"v_add_u32 v{V_WD}, s{S_T}, v5")
    S_W768 = 67
    a(f"s_mul_i32 s{S_W768}, s{S_W}, 1536")
    pstamp(a, 2)
    a("s_waitcnt lgkmcnt(0)")
    pstamp(a, 3)
    srd(a, SX, 36, 37, X_BYTES)
    a(f"s_cmp_ge_u32 s{S_HH}, 16")
    a(f"s_cselect_b32 s{SW}, s44, s38")
    a(f"s_cselect_b32 s{SW+1}, s45, s39")
    a(f"s_mov_b32 s{SW+2}, {W_BYTES}")
    a(f"s_mov_b32 s{SW+3}, 0x00020000")

    vm = Cnt()
    lg = Cnt()
    def wait_vm(*tags):
        n = vm.need(*tags)
        if n is not None:
            a(f"s_waitcnt vmcnt({n})")
    def wait_lg(*tags):
        n = lg.need(*tags)
        if n is not None:
            a(f"s_waitcnt lgkmcnt({min(n, 15)})")
    def chunk_of(s):
        a(f"s_add_u32 s{S_A}, s{S_R}, {s}")
        a(f"s_sub_u32 s{S_B}, s{S_A}, 7")
        a(f"s_min_u32 s{S_A}, s{S_A}, s{S_B}")
    def dma_x(s):
        chunk_of(s)
        base = S_XA if (s & 1) == 0 else S_XB
        a(f"s_mov_b32 m0, s{base}")
        a(f"s_lshl_b32 s{S_B}, s{S_A}, 7")
        for i in range(4):
            a(f"buffer_load_dwordx4 v{V_XD+i}, s[{SX}:{SX+3}], s{S_B} offen offset:{i*1024} lds")
            vm.issue(f"X{s}")
    def dma_w(s):
        chunk_of(s)
        a("s_mov_b32 exec_hi, 0xffff")
        a(f"s_mul_i32 s{S_A}, s{S_A}, {64*2688}")
        a(f"s_add_u32 m0, s{S_W768}, {64*s*192}")
        a(f"s_add_u32 s{S_B}, s{S_A}, {4*2688 - 768}")
        a(f"buffer_load_dwordx4 v{V_WD}, s[{SW}:{SW+3}], s{S_A} offen lds")
        a(f"buffer_load_dwordx4 v{V_WD}, s[{SW}:{SW+3}], s{S_B} offen offset:768 lds")
        vm.issue(f"W{s}", 2)
        a("s_mov_b32 exec_hi, -1")

    dma_x(0)
    dma_w(0)
    pstamp(a, 4)
    dma_x(1)
    dma_w(1)
    pstamp(a, 5)
    srd(a, SG, 48, 49, 896)
    srd(a, SWS, 54, 55, WS_SIZE)
    srd(a, SOUT, 50, 51, OUT_BYTES)
    srd(a, SDBG, 52, 53, 256)
    a(f"s_cmp_ge_u32 s{S_W}, 4")
    a(f"s_cselect_b32 s{SWO}, s46, s40")
    a(f"s_cselect_b32 s{SWO+1}, s47, s41")
    a(f"s_sub_u32 s{SWO}, s{SWO}, 4096")
    a(f"s_subb_u32 s{SWO+1}, s{SWO+1}, 0")
    a(f"s_mov_b32 s{SWO+2}, {WO_BYTES + 4096}")
    a(f"s_mov_b32 s{SWO+3}, 0x00020000")
    a(f"s_lshl_b32 s{S_T}, s{S_HH}, 18")
    a(f"s_add_u32 s{SKV}, s54, s{S_T}")
    a(f"s_addc_u32 s{SKV+1}, s55, 0")
    a(f"s_mov_b32 s{SKV+2}, 262144")
    a(f"s_mov_b32 s{SKV+3}, 0x00020000")
    a(f"s_or_b32 s{S_TAG}, s{S_TAG}, 1")
    a(f"s_or_b32 s{S_T}, s2, s{S_W}")
    a(f"s_cmp_lg_u32 s{S_T}, 0")
    a("s_cbranch_scc1 L_NOTAG")
    a(f"v_mov_b32 v4, s{S_TAG}")
    a(f"v_mov_b32 v5, s{S_TAG+1}")
    a("v_mov_b32 v6, 0")
    a("s_mov_b64 exec, 1")
    a(f"buffer_store_dwordx2 v[4:5], v6, s[{SDBG}:{SDBG+3}], 0 offen sc1")
    a("s_mov_b64 exec, -1")
    a.label("L_NOTAG")
    if "notlb" not in OPT:
        a(f"s_cmp_lg_u32 s{S_W}, 7")
        a("s_cbranch_scc1 L_NOTOUCH")
        a("v_mov_b32 v6, 0")
        a(f"s_lshl_b32 s{S_T}, s{S_TT}, 12")
        a("s_mov_b64 exec, 1")
        a(f"buffer_load_dword v14, v6, s[{SKV}:{SKV+3}], s{S_T} offen")
        a(f"s_lshl_b32 s{S_T}, s{S_QB}, 8")
        a(f"s_add_u32 s{S_T}, s{S_T}, s{S_HH}")
        a(f"s_lshl_b32 s{S_T}, s{S_T}, 11")
        a(f"s_add_u32 s{S_T}, s{S_T}, {OF_BASE}")
        a(f"buffer_load_dword v9, v6, s[{SWS}:{SWS+3}], s{S_T} offen")
        a(f"s_mov_b32 s{S_T}, {F3_BASE + 32768}")
        a(f"buffer_load_dword v10, v6, s[{SWS}:{SWS+3}], s{S_T} offen")
        a(f"s_mul_i32 s{S_T}, s{S_QB}, {256*896}")
        a(f"buffer_load_dword v11, v6, s[{SOUT}:{SOUT+3}], s{S_T} offen")
        a(f"s_movk_i32 s{S_T}, 4096")
        a(f"buffer_load_dword v12, v6, s[{SWO}:{SWO+3}], s{S_T} offen")
        a(f"buffer_load_dword v13, v6, s[{SG}:{SG+3}], 0 offen")
        a("s_mov_b64 exec, -1")
        a.label("L_NOTOUCH")
    a(f"v_and_b32 v4, 31, v{V_LANE}")
    a(f"v_lshrrev_b32 v5, 5, v{V_LANE}")
    a("v_lshrrev_b32 v6, 1, v4")
    a("v_and_b32 v6, 7, v6")
    a("v_lshlrev_b32 v7, 7, v4")
    a(f"v_add_u32 v7, s{S_XB}, v7")
    for j in range(4):
        a(f"v_add_u32 v8, {2*j}, v5")
        a("v_xor_b32 v8, v8, v6")
        a(f"v_lshl_add_u32 v{V_XR+j}, v8, 4, v7")
    a(f"v_bfe_u32 v6, v{V_LANE}, 2, 2")
    a("v_lshl_add_u32 v6, v5, 3, v6")
    a("v_mul_u32_u24 v6, 192, v6")
    a(f"v_bfe_u32 v7, v{V_LANE}, 4, 1")
    a("v_lshl_add_u32 v6, v7, 5, v6")
    a(f"v_and_b32 v7, 3, v{V_LANE}")
    a(f"v_lshl_add_u32 v{V_WR}, v7, 3, v6")
    a(f"v_add_u32 v{V_WR+1}, {14*3072}, v{V_WR}")
    S_T0, S_FT0, S_WOM, S_WOG, S_WOX, S_KPS = 44, 3, 45, 46, 47, 48
    a(f"s_and_b32 s{S_A}, s{S_W}, 3")
    a(f"s_lshr_b32 s{S_B}, s{S_W}, 2")
    a(f"s_mov_b32 s{S_KPS}, s{S_B}")
    a(f"s_lshl_b32 s{S_T}, s{S_A}, 1")
    a(f"s_add_u32 s{S_T0}, s{S_T}, s{S_B}")
    a(f"s_lshl_b32 s{S_T}, s{S_T0}, 12")
    a(f"s_add_u32 s{S_T}, s{S_T}, {L_XB}")
    a(f"v_add_u32 v{V_QR0}, s{S_T}, v{V_L16}")
    a(f"s_xor_b32 s{S_T}, s{S_T0}, 1")
    a(f"s_lshl_b32 s{S_T}, s{S_T}, 12")
    a(f"s_add_u32 s{S_T}, s{S_T}, {L_XB}")
    a(f"v_add_u32 v{V_QR1}, s{S_T}, v{V_L16}")
    a(f"s_lshl_b32 s{S_T}, s{S_B}, 12")
    a(f"v_add_u32 v{V_KP}, s{S_T}, v{V_L16}")
    a(f"v_add_u32 v{V_DM}, s{S_W4K}, v{V_L16}")
    a(f"s_lshl_b32 s{S_T}, s{S_HH}, 3")
    a(f"s_add_u32 s{S_T}, s{S_T}, s{S_W}")
    a(f"s_lshl_b32 s{S_T}, s{S_T}, 6")
    a(f"s_add_u32 s{S_T}, s{S_T}, {F2_BASE}")
    a(f"v_add_u32 v5, s{S_QB}, v{V_LANE}")
    a("v_and_b32 v5, 7, v5")
    a(f"v_lshl_add_u32 v{V_FP}, v5, 3, s{S_T}")
    a(f"s_mov_b32 s{S_FB}, 0")
    a(f"s_mov_b32 s{S_RDY}, 1")
    a(f"s_and_b32 s{S_T}, s{S_HH}, 3")
    a(f"s_lshl_b32 s{S_FT0}, s{S_T}, 2")
    a(f"s_cmp_eq_u32 s{S_T}, 3")
    a(f"s_cselect_b32 s{S_FT0}, 11, s{S_FT0}")
    a(f"v_lshrrev_b32 v4, 4, v{V_LANE}")
    a(f"v_mul_u32_u24 v5, {4*896}, v4")
    a(f"v_and_b32 v6, 15, v{V_LANE}")
    a("v_lshl_add_u32 v5, v6, 4, v5")
    a(f"s_lshl_b32 s{S_T}, s{S_FT0}, 6")
    a(f"v_add_u32 v{V_WOD}, s{S_T}, v5")
    a(f"s_mul_i32 s{S_WOM}, s{S_W}, 4352")
    a(f"s_add_u32 s{S_WOM}, s{S_WOM}, {L_WO}")
    a(f"v_bfe_u32 v4, v{V_LANE}, 2, 2")
    a("v_mul_u32_u24 v4, 1088, v4")
    a(f"v_lshrrev_b32 v5, 5, v{V_LANE}")
    a("v_lshl_add_u32 v4, v5, 8, v4")
    a(f"v_bfe_u32 v6, v{V_LANE}, 4, 1")
    a("v_lshl_add_u32 v4, v6, 5, v4")
    a(f"v_and_b32 v6, 3, v{V_LANE}")
    a("v_lshl_add_u32 v4, v6, 3, v4")
    a(f"v_add_u32 v{V_WOR}, s{S_WOM}, v4")
    a(f"s_mul_i32 s{S_WOG}, s{S_A}, {4*28*896}")
    a(f"s_add_u32 s{S_WOG}, s{S_WOG}, 4096")
    a(f"s_mov_b32 s{S_WOX}, {16*896}")
    a(f"v_mov_b32 v6, {L_FB}")
    a("v_mov_b32 v7, 0")
    a("ds_write_b32 v6, v7")
    for r in range(16, 64):
        a(f"v_mov_b32 v{r}, 0")

    def read_x(s):
        off = (L_XA - L_XB) if (s & 1) == 0 else 0
        for j in range(4):
            a(f"ds_read_b128 {vr(XF + (s&1)*16 + 4*j, 4)}, v{V_XR+j} offset:{off}")
            lg.issue(f"XR{s}")
    def read_w(ks):
        base = V_WR if ks < 14 else V_WR + 1
        off = (ks % 14) * 3072
        st = ks & 1
        for seg in (1, 2, 0):
            d = st * 12 + seg * 4
            a(f"ds_read_b64_tr_b16 {ar(d,2)}, v{base} offset:{off + seg*64}")
            a(f"ds_read_b64_tr_b16 {ar(d+2,2)}, v{base} offset:{off + seg*64 + 768}")
            lg.issue(f"WR{ks}", 2)

    stamp(a, 2)
    pstamp(a, 6)
    wait_vm("X0")
    read_x(0)
    wait_vm("W0")
    pstamp(a, 7)
    a("s_barrier")
    pstamp(a, 8)
    stamp(a, 3)
    dbgt(a, 1)
    read_w(0)
    wait_lg("XR0")
    dma_x(2)
    dma_w(2)
    pstamp(a, 9)
    for ks in range(28):
        s, j = divmod(ks, 4)
        if j == 2 and s + 1 < 7:
            wait_vm(f"X{s+1}")
            read_x(s + 1)
        if j == 3 and s + 1 < 7:
            wait_vm(f"W{s+1}")
            a("s_barrier")
        if ks + 1 < 28:
            read_w(ks + 1)
        wait_lg(f"WR{ks}", f"XR{s}")
        st = ks & 1
        x = vr(XF + (s & 1) * 16 + 4 * j, 4)
        w = lambda seg: ar(st * 12 + seg * 4, 4)
        a(f"v_mfma_f32_32x32x16_bf16 {vr(ACCK,16)}, {w(1)}, {x}, {vr(ACCK,16)}")
        a(f"v_mfma_f32_32x32x16_bf16 {vr(ACCV,16)}, {x}, {w(2)}, {vr(ACCV,16)}")
        a(f"v_mfma_f32_32x32x16_bf16 {vr(ACCQ,16)}, {w(0)}, {x}, {vr(ACCQ,16)}")
        if j == 3 and s + 3 < 7:
            wait_lg(f"XR{s+1}")
            dma_x(s + 3)
            dma_w(s + 3)
        if ks == 20:
            a("v_mov_b32 v4, 0")
            a(f"buffer_load_dwordx2 {vr(V_TAGV,2)}, v4, s[{SDBG}:{SDBG+3}], 0 offen sc1")
            vm.issue("TAG")
    stamp(a, 4)
    dbgt(a, 2)
    pstamp(a, 10)
    PK = 64
    a(f"s_lshl_b32 s{S_A}, s{S_TT}, 12")
    a(f"v_add_u32 v4, s{S_XA}, v{V_L16}")
    a(f"v_add_u32 v5, s{S_XB}, v{V_L16}")
    a(f"s_mov_b32 s{S_B}, {f32hex(QSCALE)}")
    a("s_nop 5")
    for m in range(8):
        a(f"v_cvt_pk_bf16_f32 v{PK+m}, v{ACCK+2*m}, v{ACCK+2*m+1}")
    a("s_mov_b32 exec_lo, 0")
    a(f"v_mov_b32 v{PK+6}, 0x3f803f80")
    a(f"v_mov_b32 v{PK+7}, 0x00003f80")
    a("s_mov_b32 exec_lo, -1")
    for m in range(2):
        a(f"buffer_store_dwordx4 {vr(PK+4*m,4)}, v{V_L16}, s[{SKV}:{SKV+3}], s{S_A} offen offset:{1024*m} sc1")
    for m in range(8):
        a(f"v_cvt_pk_bf16_f32 v{PK+8+m}, v{ACCV+2*m}, v{ACCV+2*m+1}")
    a("s_mov_b32 exec_lo, 0x10000000")
    a("s_mov_b32 exec_hi, 0x10000000")
    for m in range(8):
        a(f"v_mov_b32 v{PK+8+m}, 0x3f803f80")
    a("s_mov_b64 exec, -1")
    for m in range(2, 4):
        a(f"buffer_store_dwordx4 {vr(PK+4*m,4)}, v{V_L16}, s[{SKV}:{SKV+3}], s{S_A} offen offset:{1024*m} sc1")
    for m in range(2):
        a(f"ds_write_b128 v4, {vr(PK+4*m,4)} offset:{1024*m}")
    for r in range(16):
        a(f"v_mul_f32 v{ACCQ+r}, s{S_B}, v{ACCQ+r}")
    for m in range(8):
        a(f"v_cvt_pk_bf16_f32 v{PK+16+m}, v{ACCQ+2*m}, v{ACCQ+2*m+1}")
    a("s_mov_b32 exec_lo, 0")
    a(f"v_mov_b32 v{PK+16+6}, 0")
    a(f"v_mov_b32 v{PK+16+7}, 0")
    a("s_mov_b32 exec_lo, -1")
    a(f"ds_write_b128 v5, {vr(PK+16,4)}")
    a(f"ds_write_b128 v5, {vr(PK+20,4)} offset:1024")
    for m in range(2, 4):
        a(f"ds_write_b128 v4, {vr(PK+4*m,4)} offset:{1024*m}")
    a(f"v_add_u32 v4, {L_RING[0]}, v{V_L16}")
    a("s_waitcnt lgkmcnt(0)")
    a("s_barrier")
    lg.clear()

    Q = [8, 16]
    S = [24, 40]
    O = [56, 72]
    P = 88
    KR, VR = 96, 104
    a(f"ds_read_b128 {vr(KR,4)}, v4")
    a(f"ds_read_b128 {vr(Q[0],4)}, v{V_QR0}")
    a(f"ds_read_b128 {vr(Q[1],4)}, v{V_QR1}")
    a(f"ds_read_b128 {vr(KR+4,4)}, v4 offset:1024")
    a(f"ds_read_b128 {vr(Q[0]+4,4)}, v{V_QR0} offset:1024")
    a(f"ds_read_b128 {vr(Q[1]+4,4)}, v{V_QR1} offset:1024")
    a("s_waitcnt lgkmcnt(3)")
    for t in range(2):
        a(f"v_mfma_f32_32x32x16_bf16 {vr(S[t],16)}, {vr(KR,4)}, {vr(Q[t],4)}, 0")
    a("s_waitcnt lgkmcnt(0)")
    for t in range(2):
        a(f"v_mfma_f32_32x32x16_bf16 {vr(S[t],16)}, {vr(KR+4,4)}, {vr(Q[t]+4,4)}, {vr(S[t],16)}")
    a("s_barrier")
    a("s_waitcnt vmcnt(0)")
    a(f"s_mov_b32 s{S_SPIN}, {SPIN_MAX}")
    a.label("L_TAG")
    a(f"v_readfirstlane_b32 s{S_TAG}, v{V_TAGV}")
    a(f"v_readfirstlane_b32 s{S_TAG+1}, v{V_TAGV+1}")
    a(f"s_sub_u32 s{S_SPIN}, s{S_SPIN}, 1")
    a(f"s_cmp_eq_u32 s{S_SPIN}, 0")
    a("s_cbranch_scc1 L_TAG_OK")
    a(f"s_cmp_lg_u32 s{S_TAG}, 0")
    a("s_cbranch_scc1 L_TAG_OK")
    a("v_mov_b32 v4, 0")
    a(f"buffer_load_dwordx2 {vr(V_TAGV,2)}, v4, s[{SDBG}:{SDBG+3}], 0 offen sc1")
    a("s_waitcnt vmcnt(0)")
    a("s_branch L_TAG")
    a.label("L_TAG_OK")
    a("s_mov_b64 exec, 1")
    a(f"buffer_store_dwordx2 {vr(V_TAGV,2)}, v{V_FP}, s[{SWS}:{SWS+3}], 0 offen sc1")
    a("s_mov_b64 exec, -1")
    if "nop3" not in OPT:
        a(f"s_mov_b32 m0, s{S_WOM}")
        for q in range(4):
            a(f"s_sub_u32 s{S_T}, s{S_WOG}, {q*192}")
            a(f"buffer_load_dwordx4 v{V_WOD}, s[{SWO}:{SWO+3}], s{S_T} offen offset:{q*1088} lds")
        a(f"s_add_u32 s{S_WOG}, s{S_WOG}, s{S_WOX}")
        a(f"s_xor_b32 s{S_WOX}, s{S_WOX}, {(16*896) ^ (12*896)}")
    a("s_nop 3")
    for t in range(2):
        m = 4 + t
        a(f"v_max3_f32 v{m}, v{S[t]}, v{S[t]+1}, v{S[t]+2}")
        for r in range(3, 15, 2):
            a(f"v_max3_f32 v{m}, v{m}, v{S[t]+r}, v{S[t]+r+1}")
        a(f"v_max_f32 v{m}, v{m}, v{S[t]+15}")
    a.label("L_SETM")
    a(f"v_add_u32 v{V_CUR}, {L_RING[0]}, v{V_KP}")
    a(f"v_add_u32 v{V_NXT}, {L_RING[1]}, v{V_KP}")
    a("v_mov_b32 v6, v4")
    a("v_mov_b32 v7, v5")
    a(f"ds_read_b128 {vr(KR,4)}, v{V_CUR}")
    a(f"ds_read_b128 {vr(KR+4,4)}, v{V_CUR} offset:1024")
    a(f"ds_read_b128 {vr(VR,4)}, v{V_CUR} offset:2048")
    a("v_permlane32_swap_b32 v4, v6")
    a("v_permlane32_swap_b32 v5, v7")
    a(f"s_mov_b32 s{S_ST}, 0")
    a(f"s_mov_b32 s{S_CUR}, {L_RING[0]}")
    a(f"s_mov_b32 s{S_NXT}, {L_RING[1]}")
    a(f"s_mov_b32 s{S_PRV}, {L_RING[2]}")
    a("v_max_f32 v4, v4, v6")
    a("v_max_f32 v5, v5, v7")
    for t in range(2):
        m = 4 + t
        a(f"v_sub_f32 v{m}, 0, v{m}")
        a(f"v_and_b32 v6, 0xffff0000, v{m}")
        a(f"v_sub_f32 v{m}, v{m}, v6")
        a(f"v_and_b32 v7, 0xffff0000, v{m}")
        a(f"v_sub_f32 v{m}, v{m}, v7")
        a("v_lshrrev_b32 v6, 16, v6")
        a("s_mov_b32 exec_lo, 0")
        a(f"v_or_b32 v{Q[t]+6}, v6, v7")
        a(f"v_lshrrev_b32 v{Q[t]+7}, 16, v{m}")
        a("s_mov_b32 exec_lo, -1")
    a("s_waitcnt lgkmcnt(0)")
    a(f"v_mfma_f32_32x32x16_bf16 {vr(S[0],16)}, {vr(KR,4)}, {vr(Q[0],4)}, 0")
    a(f"v_mfma_f32_32x32x16_bf16 {vr(S[0],16)}, {vr(KR+4,4)}, {vr(Q[0]+4,4)}, {vr(S[0],16)}")
    for t in range(2):
        for r in range(16):
            a(f"v_mov_b32 v{O[t]+r}, 0")
    for r in range(4):
        a(f"v_mov_b32 v{P+4+r}, 0")
        a(f"v_mov_b32 v{VR+4+r}, 0")
    stamp(a, 5)
    a(f"s_cmp_lg_u32 s{S_FB}, 0")
    a("s_cbranch_scc1 L_LOOP")
    S_D1 = 49
    a(f"s_mov_b32 s{S_D1}, 0")
    a(f"buffer_load_dwordx2 {vr(V_POLL,2)}, v{V_FP}, s[{SWS}:{SWS+3}], 0 offen sc1")

    def poll_eval():
        a("s_waitcnt vmcnt(0)")
        a(f"v_cmp_eq_u64 vcc, s[{S_TAG}:{S_TAG+1}], {vr(V_POLL,2)}")
        a("s_nop 3")
        a(f"s_and_b32 s{S_RDY}, vcc_lo, 0xff")
    def poll_until(label):
        a(f"s_mov_b32 s{S_SPIN}, {SPIN_MAX}")
        a.label(label)
        a(f"s_bitcmp1_b32 s{S_RDY}, s{S_C}")
        a(f"s_cbranch_scc1 {label}_OK")
        a(f"buffer_load_dwordx2 {vr(V_POLL,2)}, v{V_FP}, s[{SWS}:{SWS+3}], 0 offen sc1")
        a(f"s_sub_u32 s{S_SPIN}, s{S_SPIN}, 1")
        poll_eval()
        a(f"s_cmp_lg_u32 s{S_SPIN}, 0")
        a(f"s_cbranch_scc1 {label}")
        a.label(label + "_OK")

    def kv_dma(slot_sgpr):
        a(f"s_add_u32 s{S_A}, s{S_QB}, s{S_C}")
        a(f"s_and_b32 s{S_A}, s{S_A}, 7")
        a(f"s_add_u32 m0, s{slot_sgpr}, s{S_W4K}")
        a(f"s_lshl_b32 s{S_A}, s{S_A}, 15")
        for i in range(4):
            a(f"buffer_load_dwordx4 v{V_DM}, s[{SKV}:{SKV+3}], s{S_A} offen offset:{i*1024} sc1 lds")

    def wo_dma():
        a(f"s_mov_b32 m0, s{S_WOM}")
        for q in range(4):
            a(f"s_sub_u32 s{S_T}, s{S_WOG}, {q*192}")
            if "nowd" not in OPT:
                a(f"buffer_load_dwordx4 v{V_WOD}, s[{SWO}:{SWO+3}], s{S_T} offen offset:{q*1088} lds")
        a(f"s_add_u32 s{S_WOG}, s{S_WOG}, s{S_WOX}")
        a(f"s_xor_b32 s{S_WOX}, s{S_WOX}, {(16*896) ^ (12*896)}")

    def wo_read(c):
        for f in range(4 if "nowr" not in OPT else 0):
            d = (c * 4 + f) * 4
            a(f"ds_read_b64_tr_b16 {ar(d,2)}, v{V_WOR} offset:{f*64}")
            a(f"ds_read_b64_tr_b16 {ar(d+2,2)}, v{V_WOR} offset:{f*64 + 512}")

    def stage(first):
        sfx = "F" if first else "L"
        for u in range(8):
            n, T = u >> 1, u & 1
            Sc, Sn = S[T], S[1 - T]
            def E(i):
                a(f"v_exp_f32 v{Sc+i}, v{Sc+i}")
            def C(i):
                a(f"v_cvt_pk_bf16_f32 v{P+i}, v{Sc+2*i}, v{Sc+2*i+1}")
            def addr(nn):
                return (V_CUR, nn * 8192) if nn < 4 else (V_NXT, 0)
            if u == 6:
                a("s_waitcnt vmcnt(0) lgkmcnt(0)")
                a("s_barrier")
            elif T == 1:
                a("s_waitcnt lgkmcnt(2)")
            if T == 0 and "noprio" not in OPT:
                a(f"s_setprio {3 - ((u + 2) % 8) // 2}")
            a(f"v_mfma_f32_32x32x16_bf16 {vr(Sn,16)}, {vr(KR,4)}, {vr(Q[1-T],4)}, 0")
            if T == 0:
                va, off = addr(n + 1)
                a(f"ds_read_b128 {vr(KR,4)}, v{va} offset:{off}")
            E(0); E(1); E(2); E(3)
            if T == 1:
                a("s_waitcnt lgkmcnt(1)")
            a(f"v_mfma_f32_32x32x16_bf16 {vr(O[1-T],16)}, {vr(VR+4,4)}, {vr(P+4,4)}, {vr(O[1-T],16)}")
            if T == 0:
                va, off = addr(n)
                a(f"ds_read_b128 {vr(VR+4,4)}, v{va} offset:{off+3072}")
            C(0); C(1)
            E(4); E(5); E(6)
            if T == 1:
                a("s_waitcnt lgkmcnt(0)")
            a(f"v_mfma_f32_32x32x16_bf16 {vr(Sn,16)}, {vr(KR+4,4)}, {vr(Q[1-T]+4,4)}, {vr(Sn,16)}")
            if T == 0:
                va, off = addr(n + 1)
                a(f"ds_read_b128 {vr(KR+4,4)}, v{va} offset:{off+1024}")
            E(7); C(2); C(3)
            if u == 7 and "nop3" not in OPT and "nosel" not in OPT:
                if first:
                    wo_read(0)
                else:
                    a(f"s_cmp_eq_u32 s{S_FB}, 0")
                    a("s_cbranch_scc1 L_WOSEL")
                    a.label("L_WORET")
            E(8); E(9); E(10)
            if T == 0:
                a("s_waitcnt lgkmcnt(3)")
            a(f"v_mfma_f32_32x32x16_bf16 {vr(O[T],16)}, {vr(VR,4)}, {vr(P,4)}, {vr(O[T],16)}")
            if T == 1:
                va, off = addr(n + 1)
                a(f"ds_read_b128 {vr(VR,4)}, v{va} offset:{off+2048}")
            E(11); C(4); C(5)
            if first and u in (1, 3, 5):
                a(f"s_cmp_lg_u32 s{S_D1}, 0")
                a(f"s_cbranch_scc1 L_CK{u}")
                poll_eval()
                a(f"s_mov_b32 s{S_C}, 1")
                if u == 5:
                    poll_until("L_P1")
                else:
                    a(f"s_bitcmp1_b32 s{S_RDY}, 1")
                    a(f"s_cbranch_scc1 L_GO{u}")
                    a(f"buffer_load_dwordx2 {vr(V_POLL,2)}, v{V_FP}, s[{SWS}:{SWS+3}], 0 offen sc1")
                    a(f"s_branch L_CK{u}")
                    a.label(f"L_GO{u}")
                kv_dma(S_NXT)
                a(f"s_mov_b32 s{S_D1}, 1")
                a.label(f"L_CK{u}")
            WU = (0, 1)
            if u in WU and not first and "nop3" not in OPT:
                a(f"s_add_u32 s{S_T}, s{S_KPS}, s{S_FB}")
                a(f"s_cmp_lg_u32 s{S_T}, {WU.index(u)}")
                a(f"s_cbranch_scc1 L_WOD{u}{sfx}")
                wo_dma()
                a.label(f"L_WOD{u}{sfx}")
            if u in (6, 7):
                a(f"s_add_u32 s{S_C}, s{S_ST}, 2")
                a(f"s_cmp_lg_u32 s{S_KPS}, {u - 6}")
                a(f"s_cbranch_scc1 L_NODMA{u}{sfx}")
                a(f"s_cmp_ge_u32 s{S_C}, 8")
                a(f"s_cbranch_scc1 L_NODMA{u}{sfx}")
                poll_until(f"L_P2{u}{sfx}")
                kv_dma(S_PRV)
                a.label(f"L_NODMA{u}{sfx}")
            if u == 7:
                a(f"s_mov_b32 s{S_T}, s{S_CUR}")
                a(f"s_mov_b32 s{S_CUR}, s{S_NXT}")
                a(f"s_mov_b32 s{S_NXT}, s{S_PRV}")
                a(f"s_mov_b32 s{S_PRV}, s{S_T}")
                a(f"v_add_u32 v{V_CUR}, s{S_CUR}, v{V_KP}")
                a(f"v_add_u32 v{V_NXT}, s{S_NXT}, v{V_KP}")
                a(f"s_add_u32 s{S_ST}, s{S_ST}, 1")
                a(f"s_cmp_lt_u32 s{S_ST}, 8")
            E(12); E(13); E(14); E(15); C(6); C(7)

    stage(True)
    stamp(a, 6)
    dbgt(a, 3)
    a.raw(".p2align 6")
    a.label("L_LOOP")
    stage(False)
    a("s_cbranch_scc1 L_LOOP")
    stamp(a, 7)
    dbgt(a, 4)
    GX, GW = S[1], KR
    a(f"s_lshr_b32 s{S_C}, s{S_HH}, 2")
    a(f"v_mfma_f32_32x32x16_bf16 {vr(O[1],16)}, {vr(VR+4,4)}, {vr(P+4,4)}, {vr(O[1],16)}")
    a(f"s_lshl_b32 s{S_A}, s{S_QB}, 3")
    a(f"s_add_u32 s{S_C}, s{S_C}, s{S_A}")
    a(f"s_lshl_b32 s{S_A}, s{S_C}, 3")
    a(f"s_add_u32 s{S_A}, s{S_A}, s{S_W}")
    a(f"s_mul_i32 s{S_A}, s{S_A}, {4*896}")
    a(f"v_lshrrev_b32 v6, 4, v{V_LANE}")
    a("v_mul_u32_u24 v6, 896, v6")
    a(f"v_and_b32 v7, 15, v{V_LANE}")
    a("v_lshlrev_b32 v7, 4, v7")
    a("v_add_u32 v6, v6, v7")
    a("s_waitcnt lgkmcnt(0)")
    for q in range(4):
        a(f"buffer_load_dwordx4 {vr(GX+4*q,4)}, v6, s[{SX}:{SX+3}], s{S_A} offen offset:{q*256}")
    for q in range(4):
        a(f"buffer_load_dwordx4 {vr(GW+4*q,4)}, v7, s[{SG}:{SG+3}], 0 offen offset:{q*256}")
    a(f"s_xor_b32 s{S_A}, s{S_W4K}, {4*4096}")
    a(f"s_add_u32 s{S_A}, s{S_A}, {L_RED}")
    a(f"v_add_u32 v4, s{S_A}, v{V_L16}")
    a(f"v_add_u32 v5, s{S_XA}, v{V_L16}")
    for q in range(4):
        a(f"ds_write_b128 v4, {vr(O[1]+4*q,4)} offset:{q*1024}")
    a(f"v_mov_b32 v6, {f32hex(2.0**39)}")
    a(f"v_max_f32 v7, v{O[0]+12}, v{O[1]+12}")
    a(f"v_add_f32 v4, v{O[0]+12}, v{O[1]+12}")
    a("v_cmp_nlt_f32 vcc, v7, v6")
    a(f"v_cmp_u_f32 s[{S_A}:{S_A+1}], v4, v4")
    a(f"v_mov_b32 v6, {L_FB}")
    a("v_mov_b32 v7, 1")
    a("s_nop 1")
    a(f"s_or_b32 s{S_A}, vcc_hi, s{S_A+1}")
    a("s_cbranch_scc0 L_NOVOTE")
    a("ds_write_b32 v6, v7")
    a.label("L_NOVOTE")
    a("s_waitcnt lgkmcnt(0)")
    a("s_barrier")
    a("ds_read_b32 v7, v6")
    for q in range(4):
        a(f"ds_read_b128 {vr(S[0]+4*q,4)}, v5 offset:{q*1024}")
    a(f"s_cmp_lg_u32 s{S_FB}, 0")
    a("s_cbranch_scc1 L_FIN")
    a("s_waitcnt lgkmcnt(4)")
    a(f"v_readfirstlane_b32 s{S_A}, v7")
    a("s_nop 3")
    a(f"s_cmp_lg_u32 s{S_A}, 0")
    a("s_cbranch_scc1 L_FALLBACK")
    a.label("L_FIN")
    a("s_waitcnt lgkmcnt(0)")
    for r in range(16):
        a(f"v_add_f32 v{O[0]+r}, v{O[0]+r}, v{S[0]+r}")
    a(f"v_mov_b32 v4, v{O[0]+12}")
    a(f"v_mov_b32 v5, v{O[0]+12}")
    a(f"s_lshl_b32 s{S_A}, s{S_QB}, 3")
    a(f"s_add_u32 s{S_A}, s{S_A}, s{S_T0}")
    a("v_permlane32_swap_b32 v4, v5")
    a(f"s_lshl_b32 s{S_A}, s{S_A}, 5")
    a(f"s_add_u32 s{S_A}, s{S_A}, s{S_HH}")
    a("v_rcp_f32 v4, v5")
    a(f"s_lshl_b32 s{S_B}, s{S_A}, 11")
    a(f"s_add_u32 s{S_B}, s{S_B}, {OF_BASE}")
    for r in range(8):
        a(f"v_mul_f32 v{O[0]+r}, v{O[0]+r}, v4")
    for m in range(4):
        a(f"v_cvt_pk_bf16_f32 v{P+m}, v{O[0]+2*m}, v{O[0]+2*m+1}")
    a(f"buffer_store_dwordx4 {vr(P,4)}, v{V_L16}, s[{SWS}:{SWS+3}], s{S_B} offen sc1")
    for r in range(8, 16):
        a(f"v_mul_f32 v{O[0]+r}, v{O[0]+r}, v4")
    for m in range(4, 8):
        a(f"v_cvt_pk_bf16_f32 v{P+m}, v{O[0]+2*m}, v{O[0]+2*m+1}")
    a("s_mov_b32 exec_lo, 0")
    a(f"v_mov_b32 v{P+6}, 0")
    a(f"v_mov_b32 v{P+7}, 0")
    a("s_mov_b32 exec_lo, -1")
    a(f"buffer_store_dwordx4 {vr(P+4,4)}, v{V_L16}, s[{SWS}:{SWS+3}], s{S_B} offen offset:1024 sc1")
    stamp(a, 8)
    if "nop3" not in OPT:
        a(f"s_lshl_b32 s{S_B}, s{S_A}, 3")
        a(f"s_add_u32 s{S_B}, s{S_B}, {F3_BASE}")
        a(f"s_lshl_b32 s{S_A}, s{S_C}, 5")
        a(f"s_lshl_b32 s{S_T}, s{S_W}, 2")
        a(f"s_add_u32 s{S_A}, s{S_A}, s{S_T}")
        a(f"s_lshl_b32 s{S_T}, s{S_A}, 3")
        a(f"s_add_u32 s{S_T}, s{S_T}, {F3_BASE}")
        a(f"v_and_b32 v7, 3, v{V_LANE}")
        a(f"v_lshl_add_u32 v{V_FP}, v7, 3, s{S_T}")
        a(f"s_lshl_b32 s{S_A}, s{S_A}, 11")
        a(f"s_add_u32 s{S_A}, s{S_A}, {OF_BASE}")
        a("v_mov_b32 v4, 0")
        a("v_mov_b32 v5, 0")
        a("s_waitcnt vmcnt(2)")
        for d in range(0, 16, 2):
            a(f"v_dot2c_f32_bf16 v4, v{GX+d}, v{GW+d}")
            a(f"v_dot2c_f32_bf16 v5, v{GX+d+1}, v{GW+d+1}")
        a(f"v_lshrrev_b32 v6, 4, v{V_LANE}")
        a("v_lshlrev_b32 v6, 2, v6")
        a(f"s_lshl_b32 s{S_T}, s{S_W}, 4")
        a(f"s_add_u32 s{S_T}, s{S_T}, {L_GV}")
        a("v_add_f32 v4, v4, v5")
        a(f"v_add_u32 v6, s{S_T}, v6")
        for sh in (8, 4, 2, 1):
            a("s_nop 1")
            a(f"v_add_f32_dpp v4, v4, v4 row_ror:{sh} row_mask:0xf bank_mask:0xf")
        a(f"v_mul_f32 v4, {f32hex(-math.log2(math.e))}, v4")
        a("v_exp_f32 v4, v4")
        a("v_mov_b32 v7, 0")
        a("v_add_f32 v4, 1.0, v4")
        a("v_rcp_f32 v4, v4")
        a("s_nop 0")
        a("ds_write_b32 v6, v4")
        a("s_waitcnt vmcnt(0)")
        a("s_mov_b64 exec, 1")
        a(f"buffer_store_dwordx2 {vr(V_TAGV,2)}, v7, s[{SWS}:{SWS+3}], s{S_B} offen sc1")
        a("s_mov_b64 exec, -1")
        a("s_waitcnt lgkmcnt(0)")
        a("s_barrier")
        ACC = 8
        OFR = 72
        a(f"v_and_b32 v5, 31, v{V_LANE}")
        a("v_lshlrev_b32 v104, 2, v5")
        a(f"v_add_u32 v104, {L_GV}, v104")
        a("ds_read_b32 v105, v104")
        a(f"s_lshl_b32 s{S_T}, s{S_C}, 5")
        a(f"v_add_u32 v5, s{S_T}, v5")
        a("v_mul_u32_u24 v5, 896, v5")
        a(f"v_lshrrev_b32 v6, 5, v{V_LANE}")
        a("v_lshl_add_u32 v107, v6, 3, v5")
        a(f"s_lshl_b32 s{S_B}, s{S_FT0}, 6")
        a(f"s_lshl_b32 s{S_T}, s{S_W}, 5")
        a(f"s_add_u32 s{S_B}, s{S_B}, s{S_T}")
        a(f"s_and_b32 s{S_C}, s{S_HH}, 2")
        a(f"s_lshr_b32 s{S_T}, s{S_W}, 1")
        a(f"s_add_u32 s{S_C}, s{S_C}, s{S_T}")
        a(f"s_cmp_eq_u32 s{S_C}, 5")
        a(f"s_cselect_b32 s{S_C}, {OOB}, s{S_B}")
        a(f"s_lshl_b32 s{S_T}, s{S_W}, 11")
        a(f"v_add_u32 v108, s{S_T}, v{V_L16}")
        a(f"v_add_u32 v109, 0x10000, v108")
        a(f"s_lshl_b32 s{S_T}, s{S_W}, 14")
        a(f"v_add_u32 v110, s{S_T}, v{V_L16}")
        a(f"s_mov_b32 s{S_SPIN}, {SPIN_MAX}")
        a.label("L_P3")
        a(f"buffer_load_dwordx2 {vr(V_POLL,2)}, v{V_FP}, s[{SWS}:{SWS+3}], 0 offen sc1")
        a(f"s_sub_u32 s{S_SPIN}, s{S_SPIN}, 1")
        a(f"s_cmp_eq_u32 s{S_SPIN}, 0")
        a("s_cbranch_scc1 L_P3_OK")
        a("s_waitcnt vmcnt(0)")
        a(f"v_cmp_eq_u64 vcc, s[{S_TAG}:{S_TAG+1}], {vr(V_POLL,2)}")
        a("s_nop 3")
        a("s_cmp_eq_u64 vcc, -1")
        a("s_cbranch_scc0 L_P3")
        a.label("L_P3_OK")
        stamp(a, 9)
        a(f"s_add_u32 s{S_B}, s{S_A}, 4096")
        for i in range(8):
            a(f"buffer_load_dwordx4 {vr(OFR+4*i,4)}, v{V_L16}, s[{SWS}:{SWS+3}], s{S_A if i < 4 else S_B} offen offset:{(i&3)*1024} sc1")
        for i in range(8):
            a(f"s_waitcnt vmcnt({7-i})")
            for f in range(4):
                c = "0" if i == 0 else vr(ACC + 16*f, 16)
                a(f"v_mfma_f32_32x32x16_bf16 {vr(ACC+16*f,16)}, {ar((i*4+f)*4,4)}, {vr(OFR+4*i,4)}, {c}")
        stamp(a, 10)
        a("s_waitcnt lgkmcnt(0)")
        a("v_sub_f32 v106, 1.0, v105")
        a("s_nop 7")
        for d in range(8):
            va = 108 if d < 4 else 109
            for q in range(2):
                a(f"ds_write_b128 v{va}, {vr(ACC + 8*d + 4*q, 4)} offset:{L_R3 + (d&3)*16384 + q*1024}")
        a("s_waitcnt lgkmcnt(0)")
        a("s_barrier")
        for src in range(8):
            for q in range(2):
                a(f"ds_read_b128 {vr(ACC + 8*src + 4*q, 4)}, v110 offset:{L_R3 + src*2048 + q*1024}")
        for br in range(2):
            b0 = ACC + 32 * br
            a(f"s_waitcnt lgkmcnt({12 - 8*br})")
            for r in range(8):
                a(f"v_add_f32 v{b0+r}, v{b0+r}, v{b0+8+r}")
            a(f"s_waitcnt lgkmcnt({8 - 8*br})")
            for r in range(8):
                a(f"v_add_f32 v{b0+16+r}, v{b0+16+r}, v{b0+24+r}")
            for r in range(8):
                a(f"v_add_f32 v{b0+r}, v{b0+r}, v{b0+16+r}")
        for r in range(8):
            a(f"v_mul_f32 v{ACC+r}, v{ACC+r}, v105")
        for r in range(8):
            a(f"v_fmac_f32 v{ACC+r}, v{ACC+32+r}, v106")
        for m in range(4):
            a(f"v_cvt_pk_bf16_f32 v{OFR+m}, v{ACC+2*m}, v{ACC+2*m+1}")
        a(f"buffer_store_dwordx2 {vr(OFR,2)}, v107, s[{SOUT}:{SOUT+3}], s{S_C} offen")
        a(f"buffer_store_dwordx2 {vr(OFR+2,2)}, v107, s[{SOUT}:{SOUT+3}], s{S_C} offen offset:16")
    dbgt_flush(a, S_W)
    stamp_flush(a, 11 if "nop3" not in OPT else 9, S_W)
    a.label("L_END")
    a("s_endpgm")

    if "nop3" not in OPT and "nosel" not in OPT:
        a.label("L_WOSEL")
        for c in range(1, 7):
            a(f"s_cmp_eq_u32 s{S_ST}, {c}")
            a(f"s_cbranch_scc1 L_WOR{c}")
        for c in (7, 1, 2, 3, 4, 5, 6):
            a.label(f"L_WOR{c}")
            wo_read(c)
            a("s_branch L_WORET")

    a.label("L_FALLBACK")
    a(f"s_mov_b32 s{S_FB}, 64")
    a("s_mov_b32 exec_lo, 0")
    for t in range(2):
        a(f"v_mov_b32 v{Q[t]+6}, 0")
        a(f"v_mov_b32 v{Q[t]+7}, 0")
    a("s_mov_b32 exec_lo, -1")
    a("v_mov_b32 v4, 0xff800000")
    a("v_mov_b32 v5, 0xff800000")
    a(f"s_mov_b32 s{S_A}, 0")
    a("s_waitcnt vmcnt(0) lgkmcnt(0)")
    a("s_barrier")
    a.label("L_FBMAX")
    a(f"buffer_load_dwordx4 {vr(KR,4)}, v{V_L16}, s[{SKV}:{SKV+3}], s{S_A} offen sc1")
    a(f"buffer_load_dwordx4 {vr(KR+4,4)}, v{V_L16}, s[{SKV}:{SKV+3}], s{S_A} offen offset:1024 sc1")
    a("s_waitcnt vmcnt(0)")
    for t in range(2):
        a(f"v_mfma_f32_32x32x16_bf16 {vr(S[t],16)}, {vr(KR,4)}, {vr(Q[t],4)}, 0")
        a(f"v_mfma_f32_32x32x16_bf16 {vr(S[t],16)}, {vr(KR+4,4)}, {vr(Q[t]+4,4)}, {vr(S[t],16)}")
    a("s_nop 15")
    for t in range(2):
        for r in range(0, 16, 2):
            a(f"v_max3_f32 v{4+t}, v{4+t}, v{S[t]+r}, v{S[t]+r+1}")
    a(f"s_add_u32 s{S_A}, s{S_A}, 4096")
    a(f"s_cmp_lt_u32 s{S_A}, 262144")
    a("s_cbranch_scc1 L_FBMAX")
    a(f"s_mov_b32 s{S_CUR}, {L_RING[0]}")
    a(f"s_mov_b32 s{S_NXT}, {L_RING[1]}")
    a(f"s_mov_b32 s{S_C}, 0")
    kv_dma(S_CUR)
    a(f"s_mov_b32 s{S_C}, 1")
    kv_dma(S_NXT)
    a("s_waitcnt vmcnt(4)")
    a("s_barrier")
    a("s_branch L_SETM")

    nsg = 102 if STAMP or "dbgt" in OPT else 78
    return a.text() + f"""
.section .rodata,"a"
.p2align 6
.amdhsa_kernel {KNAME}
  .amdhsa_next_free_vgpr 256
  .amdhsa_next_free_sgpr {nsg}
  .amdhsa_accum_offset 128
  .amdhsa_group_segment_fixed_size 0
  .amdhsa_kernarg_size 80
  .amdhsa_user_sgpr_count 2
  .amdhsa_user_sgpr_kernarg_segment_ptr 1
  .amdhsa_system_sgpr_workgroup_id_x 1
.end_amdhsa_kernel
"""

def main():
    global STAMP
    if len(sys.argv) > 2 and sys.argv[2] == "stamp": STAMP = True
    OPT.update(sys.argv[3:])
    hdr = open("cdna_kernels/" + NAME + ".s.ref").read().split("\n")
    top = [l for l in hdr if l.startswith(";") and "@launch" not in l and "Override" not in l and "grid=ceil" not in l]
    out = "\n".join(top[:11]) + "\n"
    out += f"; @launch grid=(256,1,1) block=(512,1,1) lds={LDS_BYTES}\n"
    out += '.amdgcn_target "amdgcn-amd-amdhsa--gfx950"\n'
    out += gen()
    path = sys.argv[1] if len(sys.argv) > 1 else "cdna_kernels/" + NAME + ".s"
    open(path, "w").write(out)

if __name__ == "__main__":
    main()
```

```python
import struct, sys, math

NAME = "gated_mix__softmax_full_mha__softmax_full_mha__prompt"
KNAME = NAME + "_kernel"

def f32hex(x):
    return "0x%08x" % struct.unpack("<I", struct.pack("<f", x))[0]

class Asm:
    def __init__(self):
        self.lines = []
    def __call__(self, s):
        for ln in s.strip("\n").split("\n"):
            self.lines.append("    " + ln.strip())
    def label(self, l):
        self.lines.append(l + ":")
    def raw(self, s):
        self.lines.append(s)
    def text(self):
        return "\n".join(self.lines) + "\n"

class Cnt:
    def __init__(self):
        self.q = []
    def issue(self, tag, n=1):
        for _ in range(n):
            self.q.append(tag)
    def need(self, *tags):
        idx = -1
        for i, t in enumerate(self.q):
            if t in tags:
                idx = i
        if idx < 0:
            return None
        n = len(self.q) - 1 - idx
        self.q = self.q[idx + 1:]
        return n
    def clear(self):
        self.q = []

def vr(lo, n):
    return f"v[{lo}:{lo+n-1}]"
def ar(lo, n):
    return f"a[{lo}:{lo+n-1}]"

KV_BASE = 0
OF_BASE = 8 << 20
F2_BASE = 12 << 20
F3_BASE = (12 << 20) + (64 << 10)
WS_SIZE = 13 << 20
X_BYTES = 2048 * 448 * 2
W_BYTES = 448 * 1344 * 2
WO_BYTES = 448 * 448 * 2
OUT_BYTES = 2048 * 448 * 2
OOB = 0x40000000
QSCALE = math.log2(math.e) / math.sqrt(28.0)
SPIN_MAX = 200000

L_W = 0
L_XB = 86016
L_XA = 126976
L_RING = [L_XA, 0, 32768]
L_WO = 65536
L_R3 = 0
L_RED = L_XA
L_FB = L_XA + 32768
L_GV = L_FB + 64
L_TAG = L_GV + 128
LDS_BYTES = L_TAG + 64

STAMP = False
OPT = set()
STAMP_BASE = 64 << 20
STR = [78 + 2*i for i in range(12)] + [36, 38]
def dbgt(a, slot):
    if "dbgt" not in OPT: return
    a(f"s_memrealtime s[{80+2*slot}:{81+2*slot}]")
def dbgt_flush(a, s_w):
    if "dbgt" not in OPT: return
    a("s_waitcnt vmcnt(0)")
    dbgt(a, 5)
    a("s_waitcnt lgkmcnt(0)")
    a("s_lshl_b32 s78, s2, 3")
    a(f"s_add_u32 s78, s78, s{s_w}")
    a("s_mov_b32 s79, 0x40000000")
    a("s_cmp_eq_u32 s78, 40")
    a("s_cselect_b32 s79, 16, s79")
    a("s_cmp_eq_u32 s78, 1607")
    a("s_cselect_b32 s79, 40, s79")
    a("v_mov_b32 v1, 0")
    a("s_mov_b64 exec, 1")
    for i in range(6):
        a(f"v_mov_b32 v2, s{80+2*i}")
        a(f"buffer_store_dword v2, v1, s[32:35], s79 offen offset:{4*i}")
def qstamp(a, i):
    if STAMP and "qst" in OPT:
        a(f"s_memtime s[{STR[i]}:{STR[i]+1}]")
def rstamp(a, i):
    if STAMP and "rst" in OPT:
        a(f"s_memtime s[{STR[i]}:{STR[i]+1}]")
def pstamp(a, i):
    if STAMP and "pst" in OPT:
        a(f"s_memtime s[{STR[i]}:{STR[i]+1}]")
def stamp(a, i, real=False):
    if not STAMP: return
    if ("pst" in OPT or "qst" in OPT or "rst" in OPT) and i >= 2: return
    a(f"{'s_memrealtime' if real else 's_memtime'} s[{STR[i]}:{STR[i]+1}]")
def stamp_flush(a, n, s_w):
    if not STAMP: return
    a("s_waitcnt vmcnt(0) lgkmcnt(0)")
    a(f"s_memtime s[{STR[n]}:{STR[n]+1}]")
    a(f"s_memrealtime s[{STR[n+1]}:{STR[n+1]+1}]")
    a("s_waitcnt lgkmcnt(0)")
    a("s_mov_b32 s14, 0x10000000")
    a("s_lshl_b32 s59, s2, 3")
    a(f"s_add_u32 s59, s59, s{s_w}")
    a("s_lshl_b32 s59, s59, 7")
    a(f"s_add_u32 s59, s59, {STAMP_BASE}")
    a("v_mov_b32 v1, 0")
    a("s_mov_b64 exec, 1")
    a("s_getreg_b32 s60, hwreg(HW_REG_XCC_ID)")
    a("v_mov_b32 v2, s60")
    a("v_mov_b32 v3, 0")
    a("buffer_store_dwordx2 v[2:3], v1, s[12:15], s59 offen offset:120")
    for i in range(n + 2):
        a(f"v_mov_b32 v2, s{STR[i]}")
        a(f"v_mov_b32 v3, s{STR[i]+1}")
        a(f"buffer_store_dwordx2 v[2:3], v1, s[12:15], s59 offen offset:{8*i}")
        a("s_nop 1")

def srd(a, d, lo, hi, nbytes):
    a(f"s_mov_b32 s{d}, s{lo}")
    a(f"s_mov_b32 s{d+1}, s{hi}")
    a(f"s_mov_b32 s{d+2}, {nbytes}")
    a(f"s_mov_b32 s{d+3}, 0x00020000")

def gen():
    a = Asm()
    a.raw(".text")
    a.raw(f".globl {KNAME}")
    a.raw(".p2align 8")
    a.raw(f".type {KNAME},@function")
    a.label(KNAME)
    SX, SW, SWS, SWO, SG, SKV, SOUT, SDBG = 4, 8, 12, 16, 20, 24, 28, 32
    S_HH, S_QB, S_W, S_T, S_TT, S_R = 56, 57, 58, 59, 60, 61
    S_A, S_B, S_C = 62, 63, 64
    S_XA, S_XB = 65, 66
    S_TAG = 68
    S_RDY = 70
    S_ST, S_CUR, S_NXT, S_PRV = 71, 72, 73, 74
    S_SPIN = 75
    S_W4K = 76
    S_FB = 77
    V_LANE, V_L16 = 2, 3
    a("s_cmp_ge_u32 s2, 256")
    a("s_cbranch_scc1 L_END")
    stamp(a, 0); stamp(a, 1, True); dbgt(a, 0)
    a("s_load_dwordx16 s[36:51], s[0:1], 0")
    a("s_load_dwordx4 s[52:55], s[0:1], 64")
    a(f"s_memrealtime s[{S_TAG}:{S_TAG+1}]")
    LH = 3 if "map2" in OPT else 2 if "map1" in OPT else 5 if "map4" in OPT else 4
    a(f"s_and_b32 s{S_T}, s2, 7")
    a(f"s_lshr_b32 s{S_A}, s2, 3")
    a(f"s_and_b32 s{S_HH}, s{S_T}, {(32 >> LH) - 1}")
    a(f"s_lshl_b32 s{S_HH}, s{S_HH}, {LH}")
    a(f"s_and_b32 s{S_B}, s{S_A}, {(1 << LH) - 1}")
    a(f"s_add_u32 s{S_HH}, s{S_HH}, s{S_B}")
    a(f"s_lshr_b32 s{S_QB}, s{S_T}, {5 - LH}")
    a(f"s_lshl_b32 s{S_QB}, s{S_QB}, {5 - LH}")
    a(f"s_lshr_b32 s{S_A}, s{S_A}, {LH}")
    a(f"s_add_u32 s{S_QB}, s{S_QB}, s{S_A}")
    if LH == 2:
        a(f"s_lshl_b32 s{S_B}, s{S_B}, 1")
    else:
        a(f"s_and_b32 s{S_B}, s{S_B}, 7")
        a(f"s_lshl_b32 s{S_A}, s{S_A}, 1")
    a(f"s_add_u32 s{S_R}, s{S_A}, s{S_B}")
    a(f"s_add_u32 s{S_R}, s{S_R}, s{S_T}")
    a(f"s_mul_i32 s{S_A}, s{S_R}, 37")
    a(f"s_lshr_b32 s{S_A}, s{S_A}, 8")
    a(f"s_mul_i32 s{S_A}, s{S_A}, 7")
    a(f"s_sub_u32 s{S_R}, s{S_R}, s{S_A}")
    if "norot" in OPT: a(f"s_mov_b32 s{S_R}, 0")
    a("v_lshrrev_b32 v1, 6, v0")
    a(f"v_and_b32 v{V_LANE}, 63, v0")
    a(f"v_readfirstlane_b32 s{S_W}, v1")
    a(f"v_lshlrev_b32 v{V_L16}, 4, v{V_LANE}")
    a(f"s_lshl_b32 s{S_TT}, s{S_QB}, 3")
    a("s_nop 2")
    a(f"s_add_u32 s{S_TT}, s{S_TT}, s{S_W}")
    a(f"s_lshl_b32 s{S_W4K}, s{S_W}, 12")
    a(f"s_add_u32 s{S_XA}, s{S_W4K}, {L_XA}")
    a(f"s_add_u32 s{S_XB}, s{S_W4K}, {L_XB}")

    ACCQ, ACCK, ACCV = 16, 32, 48
    XF = 64
    V_XD, V_XR, V_WD, V_WR = 96, 100, 104, 105
    V_CUR, V_NXT, V_DM, V_FP, V_WOD, V_WOR, V_TAGV, V_KP, V_QR0, V_QR1, V_POLL = 112, 113, 114, 115, 116, 117, 118, 120, 121, 122, 124
    a(f"v_lshrrev_b32 v4, 3, v{V_LANE}")
    a(f"v_and_b32 v5, 7, v{V_LANE}")
    a(f"s_lshl_b32 s{S_T}, s{S_TT}, 5")
    a(f"v_add_u32 v6, s{S_T}, v4")
    a("v_mul_u32_u24 v6, 896, v6")
    a("v_lshrrev_b32 v7, 1, v4")
    a("v_xor_b32 v8, v7, v5")
    a("v_or_b32 v7, 4, v7")
    a("v_xor_b32 v7, v7, v5")
    a(f"v_lshl_add_u32 v{V_XD}, v8, 4, v6")
    a("v_lshl_add_u32 v7, v7, 4, v6")
    a(f"v_add_u32 v{V_XD+1}, {8*896 - 1024}, v7")
    a(f"v_add_u32 v{V_XD+2}, {16*896 - 2048}, v{V_XD}")
    a(f"v_add_u32 v{V_XD+3}, {24*896 - 3072}, v7")
    a(f"v_mul_u32_u24 v5, 43, v{V_LANE}")
    a("v_lshrrev_b32 v5, 9, v5")
    a("v_mul_u32_u24 v6, 12, v5")
    a(f"v_sub_u32 v6, v{V_LANE}, v6")
    a("v_lshl_add_u32 v5, v1, 3, v5")
    a("v_mul_u32_u24 v5, 2688, v5")
    a("v_lshrrev_b32 v7, 2, v6")
    a("v_mul_u32_u24 v7, 896, v7")
    a("v_add_u32 v5, v5, v7")
    a("v_and_b32 v6, 3, v6")
    a("v_lshl_add_u32 v5, v6, 4, v5")
    a(f"s_and_b32 s{S_T}, s{S_HH}, 15")
    a(f"s_mul_i32 s{S_T}, s{S_T}, 56")
    a(f"v_add_u32 v{V_WD}, s{S_T}, v5")
    S_W768 = 67
    a(f"s_mul_i32 s{S_W768}, s{S_W}, 1536")
    pstamp(a, 2)
    a("s_waitcnt lgkmcnt(0)")
    pstamp(a, 3)
    srd(a, SX, 36, 37, X_BYTES)
    a(f"s_cmp_ge_u32 s{S_HH}, 16")
    a(f"s_cselect_b32 s{SW}, s44, s38")
    a(f"s_cselect_b32 s{SW+1}, s45, s39")
    a(f"s_mov_b32 s{SW+2}, {W_BYTES}")
    a(f"s_mov_b32 s{SW+3}, 0x00020000")

    vm = Cnt()
    lg = Cnt()
    def wait_vm(*tags):
        n = vm.need(*tags)
        if n is not None:
            a(f"s_waitcnt vmcnt({n})")
    def wait_lg(*tags):
        n = lg.need(*tags)
        if n is not None:
            a(f"s_waitcnt lgkmcnt({min(n, 15)})")
    def chunk_of(s):
        a(f"s_add_u32 s{S_A}, s{S_R}, {s}")
        a(f"s_sub_u32 s{S_B}, s{S_A}, 7")
        a(f"s_min_u32 s{S_A}, s{S_A}, s{S_B}")
    def dma_x(s):
        chunk_of(s)
        base = S_XA if (s & 1) == 0 else S_XB
        a(f"s_mov_b32 m0, s{base}")
        a(f"s_lshl_b32 s{S_B}, s{S_A}, 7")
        for i in range(4):
            a(f"buffer_load_dwordx4 v{V_XD+i}, s[{SX}:{SX+3}], s{S_B} offen offset:{i*1024} lds")
            vm.issue(f"X{s}")
    def dma_w(s):
        chunk_of(s)
        a("s_mov_b32 exec_hi, 0xffff")
        a(f"s_mul_i32 s{S_A}, s{S_A}, {64*2688}")
        a(f"s_add_u32 m0, s{S_W768}, {64*s*192}")
        a(f"s_add_u32 s{S_B}, s{S_A}, {4*2688 - 768}")
        a(f"buffer_load_dwordx4 v{V_WD}, s[{SW}:{SW+3}], s{S_A} offen lds")
        a(f"buffer_load_dwordx4 v{V_WD}, s[{SW}:{SW+3}], s{S_B} offen offset:768 lds")
        vm.issue(f"W{s}", 2)
        a("s_mov_b32 exec_hi, -1")

    dma_x(0)
    dma_w(0)
    pstamp(a, 4)
    dma_x(1)
    dma_w(1)
    pstamp(a, 5)
    srd(a, SG, 48, 49, 896)
    srd(a, SWS, 54, 55, WS_SIZE)
    srd(a, SOUT, 50, 51, OUT_BYTES)
    srd(a, SDBG, 52, 53, 256)
    a(f"s_cmp_ge_u32 s{S_W}, 4")
    a(f"s_cselect_b32 s{SWO}, s46, s40")
    a(f"s_cselect_b32 s{SWO+1}, s47, s41")
    a(f"s_sub_u32 s{SWO}, s{SWO}, 4096")
    a(f"s_subb_u32 s{SWO+1}, s{SWO+1}, 0")
    a(f"s_mov_b32 s{SWO+2}, {WO_BYTES + 4096}")
    a(f"s_mov_b32 s{SWO+3}, 0x00020000")
    a(f"s_lshl_b32 s{S_T}, s{S_HH}, 18")
    a(f"s_add_u32 s{SKV}, s54, s{S_T}")
    a(f"s_addc_u32 s{SKV+1}, s55, 0")
    a(f"s_mov_b32 s{SKV+2}, 262144")
    a(f"s_mov_b32 s{SKV+3}, 0x00020000")
    a(f"s_or_b32 s{S_TAG}, s{S_TAG}, 1")
    a(f"s_or_b32 s{S_T}, s2, s{S_W}")
    a(f"s_cmp_lg_u32 s{S_T}, 0")
    a("s_cbranch_scc1 L_NOTAG")
    a(f"v_mov_b32 v4, s{S_TAG}")
    a(f"v_mov_b32 v5, s{S_TAG+1}")
    a("v_mov_b32 v6, 0")
    a("s_mov_b64 exec, 1")
    a(f"buffer_store_dwordx2 v[4:5], v6, s[{SDBG}:{SDBG+3}], 0 offen sc1")
    a("s_mov_b64 exec, -1")
    a.label("L_NOTAG")
    if "etouch" in OPT:
        a(f"s_and_b32 s{S_T}, s{S_W}, 3")
        a(f"s_cmp_lg_u32 s{S_T}, 3")
        a("s_cbranch_scc1 L_NOTOUCH")
        a("v_mov_b32 v6, 0")
        a(f"s_lshl_b32 s{S_T}, s{S_TT}, 12")
        a("s_mov_b64 exec, 1")
        a(f"buffer_load_dword v123, v6, s[{SKV}:{SKV+3}], s{S_T} offen")
        a(f"s_movk_i32 s{S_T}, 4096")
        a(f"buffer_load_dword v123, v6, s[{SWO}:{SWO+3}], s{S_T} offen")
        a(f"s_mov_b32 s{S_T}, {F3_BASE + 32768}")
        a(f"buffer_load_dword v123, v6, s[{SWS}:{SWS+3}], s{S_T} offen")
        a(f"s_lshl_b32 s{S_T}, s{S_QB}, 8")
        a(f"s_add_u32 s{S_T}, s{S_T}, s{S_HH}")
        a(f"s_lshl_b32 s{S_T}, s{S_T}, 11")
        a(f"s_add_u32 s{S_T}, s{S_T}, {OF_BASE}")
        a(f"buffer_load_dword v123, v6, s[{SWS}:{SWS+3}], s{S_T} offen")
        a(f"s_mul_i32 s{S_T}, s{S_QB}, {256*896}")
        a(f"buffer_load_dword v123, v6, s[{SOUT}:{SOUT+3}], s{S_T} offen")
        a(f"buffer_load_dword v123, v6, s[{SG}:{SG+3}], 0 offen")
        a("s_mov_b64 exec, -1")
        a.label("L_NOTOUCH")
    if "nopf" not in OPT:
        a(f"s_cmp_lg_u32 s{S_W}, 6")
        a("s_cbranch_scc1 L_NOPF")
        a("s_getpc_b64 s[40:41]")
        a.label("L_PC")
        a(f"s_sub_u32 s40, s40, L_PC-{KNAME}")
        a("s_subb_u32 s41, s41, 0")
        a(f"s_mov_b32 s42, L_CODE_END-{KNAME}")
        a("s_mov_b32 s43, 0x00020000")
        a(f"s_lshr_b32 s{S_T}, s2, 3")
        a(f"s_lshl_b32 s{S_T}, s{S_T}, 10")
        a(f"buffer_load_dwordx4 v[12:15], v{V_L16}, s[40:43], s{S_T} offen")
        a.label("L_NOPF")
    a(f"v_and_b32 v4, 31, v{V_LANE}")
    a(f"v_lshrrev_b32 v5, 5, v{V_LANE}")
    a("v_lshrrev_b32 v6, 1, v4")
    a("v_and_b32 v6, 7, v6")
    a("v_lshlrev_b32 v7, 7, v4")
    a(f"v_add_u32 v7, s{S_XB}, v7")
    for j in range(4):
        a(f"v_add_u32 v8, {2*j}, v5")
        a("v_xor_b32 v8, v8, v6")
        a(f"v_lshl_add_u32 v{V_XR+j}, v8, 4, v7")
    a(f"v_bfe_u32 v6, v{V_LANE}, 2, 2")
    a("v_lshl_add_u32 v6, v5, 3, v6")
    a("v_mul_u32_u24 v6, 192, v6")
    a(f"v_bfe_u32 v7, v{V_LANE}, 4, 1")
    a("v_lshl_add_u32 v6, v7, 5, v6")
    a(f"v_and_b32 v7, 3, v{V_LANE}")
    a(f"v_lshl_add_u32 v{V_WR}, v7, 3, v6")
    a(f"v_add_u32 v{V_WR+1}, {14*3072}, v{V_WR}")
    S_T0, S_FT0, S_WOM, S_WOG, S_WOX, S_KPS = 44, 3, 45, 46, 47, 48
    a(f"s_and_b32 s{S_A}, s{S_W}, 3")
    a(f"s_lshr_b32 s{S_B}, s{S_W}, 2")
    a(f"s_mov_b32 s{S_KPS}, s{S_B}")
    a(f"s_lshl_b32 s{S_T}, s{S_A}, 1")
    a(f"s_add_u32 s{S_T0}, s{S_T}, s{S_B}")
    a(f"s_lshl_b32 s{S_T}, s{S_T0}, 12")
    a(f"s_add_u32 s{S_T}, s{S_T}, {L_XB}")
    a(f"v_add_u32 v{V_QR0}, s{S_T}, v{V_L16}")
    a(f"s_xor_b32 s{S_T}, s{S_T0}, 1")
    a(f"s_lshl_b32 s{S_T}, s{S_T}, 12")
    a(f"s_add_u32 s{S_T}, s{S_T}, {L_XB}")
    a(f"v_add_u32 v{V_QR1}, s{S_T}, v{V_L16}")
    a(f"s_lshl_b32 s{S_T}, s{S_B}, 12")
    a(f"v_add_u32 v{V_KP}, s{S_T}, v{V_L16}")
    a(f"v_add_u32 v{V_DM}, s{S_W4K}, v{V_L16}")
    a(f"s_lshl_b32 s{S_T}, s{S_HH}, 3")
    a(f"s_add_u32 s{S_T}, s{S_T}, s{S_W}")
    a(f"s_lshl_b32 s{S_T}, s{S_T}, 6")
    a(f"s_add_u32 s{S_T}, s{S_T}, {F2_BASE}")
    a(f"v_add_u32 v5, s{S_QB}, v{V_LANE}")
    a("v_and_b32 v5, 7, v5")
    a(f"v_lshl_add_u32 v{V_FP}, v5, 3, s{S_T}")
    a(f"s_mov_b32 s{S_FB}, 0")
    a(f"s_mov_b32 s{S_RDY}, 1")
    a(f"s_and_b32 s{S_T}, s{S_HH}, 3")
    a(f"s_lshl_b32 s{S_FT0}, s{S_T}, 2")
    a(f"s_cmp_eq_u32 s{S_T}, 3")
    a(f"s_cselect_b32 s{S_FT0}, 11, s{S_FT0}")
    a(f"v_lshrrev_b32 v4, 4, v{V_LANE}")
    a(f"v_mul_u32_u24 v5, {4*896}, v4")
    a(f"v_and_b32 v6, 15, v{V_LANE}")
    a("v_lshl_add_u32 v5, v6, 4, v5")
    a(f"s_lshl_b32 s{S_T}, s{S_FT0}, 6")
    a(f"v_add_u32 v{V_WOD}, s{S_T}, v5")
    a(f"s_mul_i32 s{S_WOM}, s{S_W}, 4352")
    a(f"s_add_u32 s{S_WOM}, s{S_WOM}, {L_WO}")
    a(f"v_bfe_u32 v4, v{V_LANE}, 2, 2")
    a("v_mul_u32_u24 v4, 1088, v4")
    a(f"v_lshrrev_b32 v5, 5, v{V_LANE}")
    a("v_lshl_add_u32 v4, v5, 8, v4")
    a(f"v_bfe_u32 v6, v{V_LANE}, 4, 1")
    a("v_lshl_add_u32 v4, v6, 5, v4")
    a(f"v_and_b32 v6, 3, v{V_LANE}")
    a("v_lshl_add_u32 v4, v6, 3, v4")
    a(f"v_add_u32 v{V_WOR}, s{S_WOM}, v4")
    a(f"s_mul_i32 s{S_WOG}, s{S_A}, {4*28*896}")
    a(f"s_add_u32 s{S_WOG}, s{S_WOG}, 4096")
    a(f"s_mov_b32 s{S_WOX}, {16*896}")
    a(f"v_mov_b32 v6, {L_FB}")
    a("v_mov_b32 v7, 0")
    a("ds_write_b32 v6, v7")
    for r in range(16, 64):
        a(f"v_mov_b32 v{r}, 0")

    def read_x(s):
        off = (L_XA - L_XB) if (s & 1) == 0 else 0
        for j in range(4):
            a(f"ds_read_b128 {vr(XF + (s&1)*16 + 4*j, 4)}, v{V_XR+j} offset:{off}")
            lg.issue(f"XR{s}")
    def read_w(ks):
        base = V_WR if ks < 14 else V_WR + 1
        off = (ks % 14) * 3072
        st = ks & 1
        for seg in (1, 2, 0):
            d = st * 12 + seg * 4
            a(f"ds_read_b64_tr_b16 {ar(d,2)}, v{base} offset:{off + seg*64}")
            a(f"ds_read_b64_tr_b16 {ar(d+2,2)}, v{base} offset:{off + seg*64 + 768}")
            lg.issue(f"WR{ks}", 2)

    stamp(a, 2)
    pstamp(a, 6)
    wait_vm("X0")
    read_x(0)
    wait_vm("W0")
    pstamp(a, 7)
    a("s_barrier")
    pstamp(a, 8)
    stamp(a, 3)
    dbgt(a, 1)
    read_w(0)
    wait_lg("XR0")
    dma_x(2)
    dma_w(2)
    pstamp(a, 9)
    TKS = 17
    for o in OPT:
        if o.startswith("tks"): TKS = int(o[3:])
    for ks in range(28):
        s, j = divmod(ks, 4)
        if j == 2 and s + 1 < 7:
            wait_vm(f"X{s+1}")
            read_x(s + 1)
        if j == 3 and s + 1 < 7:
            wait_vm(f"W{s+1}")
            a("s_barrier")
        if ks + 1 < 28:
            read_w(ks + 1)
        wait_lg(f"WR{ks}", f"XR{s}")
        st = ks & 1
        x = vr(XF + (s & 1) * 16 + 4 * j, 4)
        w = lambda seg: ar(st * 12 + seg * 4, 4)
        a(f"v_mfma_f32_32x32x16_bf16 {vr(ACCK,16)}, {w(1)}, {x}, {vr(ACCK,16)}")
        a(f"v_mfma_f32_32x32x16_bf16 {vr(ACCV,16)}, {x}, {w(2)}, {vr(ACCV,16)}")
        a(f"v_mfma_f32_32x32x16_bf16 {vr(ACCQ,16)}, {w(0)}, {x}, {vr(ACCQ,16)}")
        if j == 3 and s + 3 < 7:
            wait_lg(f"XR{s+1}")
            dma_x(s + 3)
            dma_w(s + 3)
        if ks == 17 and "wpf" in OPT:
            a(f"s_lshr_b32 s{S_A}, s{S_HH}, 2")
            a(f"s_and_b32 s{S_A}, s{S_A}, 3")
            a(f"s_mul_i32 s{S_A}, s{S_A}, {28*896}")
            a(f"s_and_b32 s{S_B}, s{S_QB}, 1")
            a(f"s_mul_i32 s{S_B}, s{S_B}, {16*896}")
            a(f"s_add_u32 s{S_A}, s{S_A}, s{S_B}")
            a(f"s_add_u32 s{S_A}, s{S_A}, s{S_WOG}")
            for q in range(4):
                a(f"buffer_load_dword v123, v{V_WOD}, s[{SWO}:{SWO+3}], s{S_A} offen offset:{q*896}")
            vm.issue("PF", 4)
        if ks == TKS and "tlb" in OPT:
            a(f"s_and_b32 s{S_T}, s{S_W}, 3")
            a(f"s_cmp_eq_u32 s{S_T}, 3")
            a(f"s_cselect_b32 s{S_T}, 0, {OOB}")
            a(f"v_mov_b32 v6, s{S_T}")
            a(f"s_lshl_b32 s{S_T}, s{S_TT}, 12")
            a("s_mov_b64 exec, 1")
            a(f"buffer_load_dword v123, v6, s[{SKV}:{SKV+3}], s{S_T} offen")
            a(f"s_movk_i32 s{S_T}, 4096")
            a(f"buffer_load_dword v123, v6, s[{SWO}:{SWO+3}], s{S_T} offen")
            a(f"s_mov_b32 s{S_T}, {F3_BASE + 32768}")
            a(f"buffer_load_dword v123, v6, s[{SWS}:{SWS+3}], s{S_T} offen")
            a(f"s_lshl_b32 s{S_T}, s{S_QB}, 8")
            a(f"s_add_u32 s{S_T}, s{S_T}, s{S_HH}")
            a(f"s_lshl_b32 s{S_T}, s{S_T}, 11")
            a(f"s_add_u32 s{S_T}, s{S_T}, {OF_BASE}")
            a(f"buffer_load_dword v123, v6, s[{SWS}:{SWS+3}], s{S_T} offen")
            a(f"s_mul_i32 s{S_T}, s{S_QB}, {256*896}")
            a(f"buffer_load_dword v123, v6, s[{SOUT}:{SOUT+3}], s{S_T} offen")
            a(f"buffer_load_dword v123, v6, s[{SG}:{SG+3}], 0 offen")
            a("s_mov_b64 exec, -1")
            vm.issue("TOUCH", 6)
        if ks == 20:
            a("v_mov_b32 v9, 0")
            a(f"buffer_load_dwordx2 {vr(V_TAGV,2)}, v9, s[{SDBG}:{SDBG+3}], 0 offen sc1")
            vm.issue("TAG")
    stamp(a, 4)
    qstamp(a, 2)
    dbgt(a, 2)
    pstamp(a, 10)
    PK = 64
    a(f"s_lshl_b32 s{S_A}, s{S_TT}, 12")
    a(f"v_add_u32 v4, s{S_XA}, v{V_L16}")
    a(f"v_add_u32 v5, s{S_XB}, v{V_L16}")
    a(f"s_mov_b32 s{S_B}, {f32hex(QSCALE)}")
    a("s_nop 5")
    for m in range(8):
        a(f"v_cvt_pk_bf16_f32 v{PK+m}, v{ACCK+2*m}, v{ACCK+2*m+1}")
    a("s_mov_b32 exec_lo, 0")
    a(f"v_mov_b32 v{PK+6}, 0x3f803f80")
    a(f"v_mov_b32 v{PK+7}, 0x00003f80")
    a("s_mov_b32 exec_lo, -1")
    for m in range(2):
        a(f"buffer_store_dwordx4 {vr(PK+4*m,4)}, v{V_L16}, s[{SKV}:{SKV+3}], s{S_A} offen offset:{1024*m} sc1")
    for r in range(16):
        a(f"v_mul_f32 v{ACCQ+r}, s{S_B}, v{ACCQ+r}")
    for m in range(8):
        a(f"v_cvt_pk_bf16_f32 v{PK+16+m}, v{ACCQ+2*m}, v{ACCQ+2*m+1}")
    a("s_mov_b32 exec_lo, 0")
    a(f"v_mov_b32 v{PK+16+6}, 0")
    a(f"v_mov_b32 v{PK+16+7}, 0")
    a("s_mov_b32 exec_lo, -1")
    SD = ACCK
    a(f"v_mfma_f32_32x32x16_bf16 {vr(SD,16)}, {vr(PK,4)}, {vr(PK+16,4)}, 0")
    a(f"v_mfma_f32_32x32x16_bf16 {vr(SD,16)}, {vr(PK+4,4)}, {vr(PK+20,4)}, {vr(SD,16)}")
    for m in range(8):
        a(f"v_cvt_pk_bf16_f32 v{PK+8+m}, v{ACCV+2*m}, v{ACCV+2*m+1}")
    if "vzero" in OPT:
        a("s_mov_b32 exec_lo, 0xe0000000")
        a("s_mov_b32 exec_hi, 0xe0000000")
        for m in range(8):
            a(f"v_mov_b32 v{PK+8+m}, 0")
    a("s_mov_b32 exec_lo, 0x10000000")
    a("s_mov_b32 exec_hi, 0x10000000")
    for m in range(8):
        a(f"v_mov_b32 v{PK+8+m}, 0x3f803f80")
    a("s_mov_b64 exec, -1")
    for m in range(2, 4):
        a(f"buffer_store_dwordx4 {vr(PK+4*m,4)}, v{V_L16}, s[{SKV}:{SKV+3}], s{S_A} offen offset:{1024*m} sc1")
    for m in range(4):
        a(f"ds_write_b128 v4, {vr(PK+4*m,4)} offset:{1024*m}")
    a(f"ds_write_b128 v5, {vr(PK+16,4)}")
    def split_m(m, q6):
        a(f"v_sub_f32 v{m}, 0, v{m}")
        a(f"v_and_b32 v6, 0xffff0000, v{m}")
        a(f"v_sub_f32 v{m}, v{m}, v6")
        a(f"v_and_b32 v7, 0xffff0000, v{m}")
        a(f"v_sub_f32 v{m}, v{m}, v7")
        a("v_lshrrev_b32 v6, 16, v6")
        a("s_mov_b32 exec_lo, 0")
        a(f"v_or_b32 v{q6}, v6, v7")
        a(f"v_lshrrev_b32 v{q6+1}, 16, v{m}")
        a("s_mov_b32 exec_lo, -1")
    a(f"v_max3_f32 v4, v{SD}, v{SD+1}, v{SD+2}")
    a(f"v_max3_f32 v6, v{SD+3}, v{SD+4}, v{SD+5}")
    a(f"v_max3_f32 v4, v4, v{SD+6}, v{SD+7}")
    a(f"v_max3_f32 v6, v6, v{SD+8}, v{SD+9}")
    a(f"v_max3_f32 v4, v4, v{SD+10}, v{SD+11}")
    a(f"v_max3_f32 v6, v6, v{SD+12}, v{SD+13}")
    a(f"v_max3_f32 v4, v4, v{SD+14}, v{SD+15}")
    a("v_max_f32 v4, v4, v6")
    a("v_mov_b32 v6, v4")
    a("s_nop 1")
    a("v_permlane32_swap_b32 v4, v6")
    a("s_nop 0")
    a("v_max_f32 v4, v4, v6")
    split_m(4, PK + 16 + 6)
    a(f"ds_write_b128 v5, {vr(PK+20,4)} offset:1024")
    qstamp(a, 3)
    a(f"s_mov_b32 s{S_SPIN}, {SPIN_MAX}")
    a.label("L_TAG")
    a("s_waitcnt vmcnt(0)")
    a(f"v_readfirstlane_b32 s{S_TAG}, v{V_TAGV}")
    a(f"v_readfirstlane_b32 s{S_TAG+1}, v{V_TAGV+1}")
    a(f"s_sub_u32 s{S_SPIN}, s{S_SPIN}, 1")
    a(f"s_cmp_eq_u32 s{S_TAG}, 0")
    a("s_cbranch_scc1 L_TAGSLOW")
    a.label("L_TAG_OK")
    qstamp(a, 4)
    a("s_mov_b64 exec, 1")
    a(f"buffer_store_dwordx2 {vr(V_TAGV,2)}, v{V_FP}, s[{SWS}:{SWS+3}], 0 offen sc1")
    a("s_mov_b64 exec, -1")
    a("s_waitcnt lgkmcnt(0)")
    a("s_barrier")
    lg.clear()

    Q = [8, 16]
    S = [24, 40]
    O = [56, 72]
    P = 88
    KR, VR = 96, 104
    a(f"ds_read_b128 {vr(Q[0],4)}, v{V_QR1}")
    a(f"ds_read_b128 {vr(Q[0]+4,4)}, v{V_QR1} offset:1024")
    a(f"ds_read_b128 {vr(Q[1],4)}, v{V_QR0}")
    a(f"ds_read_b128 {vr(Q[1]+4,4)}, v{V_QR0} offset:1024")
    a.label("L_PRIME")
    a(f"v_add_u32 v{V_CUR}, {L_RING[0]}, v{V_KP}")
    a(f"v_add_u32 v{V_NXT}, {L_RING[1]}, v{V_KP}")
    a(f"ds_read_b128 {vr(KR,4)}, v{V_CUR}")
    a(f"ds_read_b128 {vr(KR+4,4)}, v{V_CUR} offset:1024")
    a(f"ds_read_b128 {vr(VR,4)}, v{V_CUR} offset:2048")
    a(f"s_mov_b32 s{S_ST}, 0")
    a(f"s_mov_b32 s{S_CUR}, {L_RING[0]}")
    a(f"s_mov_b32 s{S_NXT}, {L_RING[1]}")
    a(f"s_mov_b32 s{S_PRV}, {L_RING[2]}")
    for r in range(16):
        a(f"v_mov_b32 v{O[0]+r}, 0")
    for r in range(4):
        a(f"v_mov_b32 v{P+4+r}, 0")
        a(f"v_mov_b32 v{VR+4+r}, 0")
    a("s_waitcnt lgkmcnt(0)")
    a(f"v_mfma_f32_32x32x16_bf16 {vr(S[0],16)}, {vr(KR,4)}, {vr(Q[0],4)}, 0")
    a(f"v_mfma_f32_32x32x16_bf16 {vr(S[0],16)}, {vr(KR+4,4)}, {vr(Q[0]+4,4)}, {vr(S[0],16)}")
    for r in range(16):
        a(f"v_mov_b32 v{O[1]+r}, 0")
    a(f"s_cmp_lg_u32 s{S_FB}, 0")
    a("s_cbranch_scc1 L_LOOP")
    a("s_barrier")
    a(f"buffer_load_dwordx2 {vr(V_POLL,2)}, v{V_FP}, s[{SWS}:{SWS+3}], 0 offen sc1")
    stamp(a, 5)
    qstamp(a, 5)
    S_D1 = 49
    a(f"s_mov_b32 s{S_D1}, 0")
    a("s_movk_i32 s50, 0xfe")

    S_REM = 50
    PR = [V_POLL, 126, 122]
    def poll_issue(r):
        a(f"buffer_load_dwordx2 {vr(r,2)}, v{V_FP}, s[{SWS}:{SWS+3}], 0 offen sc1")
    def poll_eval(r, n=0):
        a(f"s_waitcnt vmcnt({n})")
        a(f"v_cmp_eq_u64 vcc, s[{S_TAG}:{S_TAG+1}], {vr(r,2)}")
        a("s_nop 3")
        a(f"s_and_b32 s{S_RDY}, vcc_lo, 0xff")
    def avail():
        if "adapt" in OPT:
            a(f"s_and_b32 s{S_C}, s{S_RDY}, s{S_REM}")
        else:
            a(f"s_sub_u32 s{S_C}, 0, s{S_REM}")
            a(f"s_and_b32 s{S_C}, s{S_C}, s{S_REM}")
            a(f"s_and_b32 s{S_C}, s{S_C}, s{S_RDY}")
    def poll_until(label):
        a(f"s_mov_b32 s{S_SPIN}, {SPIN_MAX}")
        a.label(label)
        avail()
        a(f"s_cbranch_scc1 {label}_OK")
        poll_issue(V_POLL)
        a(f"s_sub_u32 s{S_SPIN}, s{S_SPIN}, 1")
        poll_eval(V_POLL)
        a(f"s_cmp_lg_u32 s{S_SPIN}, 0")
        a(f"s_cbranch_scc1 {label}")
        a(f"s_mov_b32 s{S_C}, s{S_REM}")
        a.label(label + "_OK")

    def kv_dma(slot_sgpr):
        a(f"s_ff1_i32_b32 s{S_C}, s{S_C}")
        a(f"s_bitset0_b32 s{S_REM}, s{S_C}")
        a(f"s_add_u32 s{S_A}, s{S_QB}, s{S_C}")
        a(f"s_and_b32 s{S_A}, s{S_A}, 7")
        a(f"s_add_u32 m0, s{slot_sgpr}, s{S_W4K}")
        a(f"s_lshl_b32 s{S_A}, s{S_A}, 15")
        for i in range(4):
            a(f"buffer_load_dwordx4 v{V_DM}, s[{SKV}:{SKV+3}], s{S_A} offen offset:{i*1024} sc1 lds")

    def wo_dma():
        a(f"s_mov_b32 m0, s{S_WOM}")
        for q in range(4):
            a(f"s_sub_u32 s{S_T}, s{S_WOG}, {q*192}")
            if "nowd" not in OPT:
                a(f"buffer_load_dwordx4 v{V_WOD}, s[{SWO}:{SWO+3}], s{S_T} offen offset:{q*1088} lds")
        a(f"s_add_u32 s{S_WOG}, s{S_WOG}, s{S_WOX}")
        a(f"s_xor_b32 s{S_WOX}, s{S_WOX}, {(16*896) ^ (12*896)}")

    def wo_read(c):
        for f in range(4 if "nowr" not in OPT else 0):
            d = (c * 4 + f) * 4
            a(f"ds_read_b64_tr_b16 {ar(d,2)}, v{V_WOR} offset:{f*64}")
            a(f"ds_read_b64_tr_b16 {ar(d+2,2)}, v{V_WOR} offset:{f*64 + 512}")

    def wo_read_half(c, hf):
        for f in range(2 * hf, 2 * hf + 2):
            d = (c * 4 + f) * 4
            a(f"ds_read_b64_tr_b16 {ar(d,2)}, v{V_WOR} offset:{f*64}")
            a(f"ds_read_b64_tr_b16 {ar(d+2,2)}, v{V_WOR} offset:{f*64 + 512}")
    def wo_piece(st, q):
        row0 = (st >> 1) * 28 + (st & 1) * 16
        a(f"s_mov_b32 m0, s{S_WOM}")
        a(f"s_add_u32 s{S_T}, s{S_WOG}, {row0*896 - q*192}")
        a(f"buffer_load_dwordx4 v{V_WOD}, s[{SWO}:{SWO+3}], s{S_T} offen offset:{q*1088} lds")
    S_KVS = 51
    def send_partial():
        a(f"s_xor_b32 s{S_A}, s{S_W4K}, {4*4096}")
        a(f"s_add_u32 s{S_A}, s{S_A}, {L_RED}")
        a(f"v_add_u32 v4, s{S_A}, v{V_L16}")
        for q in range(4):
            a(f"ds_write_b128 v4, {vr(O[0]+4*q,4)} offset:{q*1024}")
    def kv_piece(st, i):
        a(f"s_add_u32 m0, s{S_W4K}, {L_RING[(st + 2) % 3]}")
        a("s_nop 0")
        a(f"buffer_load_dwordx4 v{V_DM}, s[{SKV}:{SKV+3}], s{S_KVS} offen offset:{i*1024} sc1 lds")
    def stage(first, st=None):
        sfx = "F" if first else ("L" if st is None else f"S{st}")
        for u in range(8):
            n, T = u >> 1, u & 1
            Sc, Sn = S[T], S[1 - T]
            def E(i):
                a(f"v_exp_f32 v{Sc+i}, v{Sc+i}")
            def C(i):
                a(f"v_cvt_pk_bf16_f32 v{P+i}, v{Sc+2*i}, v{Sc+2*i+1}")
            def addr(nn):
                if st is None:
                    return (V_CUR, nn * 8192) if nn < 4 else (V_NXT, 0)
                slot = L_RING[(st + (nn >> 2)) % 3]
                return (V_CUR, (nn & 3) * 8192) if slot == L_RING[0] else (V_KP, slot + (nn & 3) * 8192)
            if u == 6:
                if first: qstamp(a, 7)
                a("s_waitcnt vmcnt(0) lgkmcnt(0)")
                if first: qstamp(a, 8)
                a("s_barrier")
                if first: qstamp(a, 9)
            elif T == 1:
                a("s_waitcnt lgkmcnt(2)")
            if u == 6 and st is not None:
                wo_read_half(st, 0)
            if T == 0 and "noprio" not in OPT:
                a(f"s_setprio {3 - ((u + 2) % 8) // 2}")
            last = (st == 7 and u == 7)
            if not last:
                a(f"v_mfma_f32_32x32x16_bf16 {vr(Sn,16)}, {vr(KR,4)}, {vr(Q[1-T],4)}, 0")
            if T == 0:
                va, off = addr(n + 1)
                a(f"ds_read_b128 {vr(KR,4)}, v{va} offset:{off}")
            E(0); E(1); E(2); E(3)
            if T == 1:
                a("s_waitcnt lgkmcnt(1)")
            a(f"v_mfma_f32_32x32x16_bf16 {vr(O[1-T],16)}, {vr(VR+4,4)}, {vr(P+4,4)}, {vr(O[1-T],16)}")
            if T == 0:
                va, off = addr(n)
                a(f"ds_read_b128 {vr(VR+4,4)}, v{va} offset:{off+3072}")
            C(0); C(1)
            if u in (6, 7) and st is not None and st < 6:
                if u == 6:
                    a(f"s_bitcmp1_b32 s{S_RDY}, {st + 2}")
                    a(f"s_cbranch_scc0 L_SLOW{st}")
                    a.label(f"L_FAST{st}")
                    a(f"s_add_u32 s{S_KVS}, s{S_QB}, {st + 2}")
                    a(f"s_and_b32 s{S_KVS}, s{S_KVS}, 7")
                    a(f"s_lshl_b32 s{S_KVS}, s{S_KVS}, 15")
                kv_piece(st, 2 * (u - 6))
            E(4); E(5); E(6)
            if T == 1:
                a("s_waitcnt lgkmcnt(0)")
            if not last:
                a(f"v_mfma_f32_32x32x16_bf16 {vr(Sn,16)}, {vr(KR+4,4)}, {vr(Q[1-T]+4,4)}, {vr(Sn,16)}")
            if T == 0:
                va, off = addr(n + 1)
                a(f"ds_read_b128 {vr(KR+4,4)}, v{va} offset:{off+1024}")
            E(7); C(2); C(3)
            if u == 7 and st is not None:
                wo_read_half(st, 1)
            if st and u in (1, 2):
                wo_piece(st, 2 * u - 1)
            E(8); E(9); E(10)
            if T == 0:
                a("s_waitcnt lgkmcnt(3)")
            a(f"v_mfma_f32_32x32x16_bf16 {vr(O[T],16)}, {vr(VR,4)}, {vr(P,4)}, {vr(O[T],16)}")
            if T == 1 and not last:
                va, off = addr(n + 1)
                a(f"ds_read_b128 {vr(VR,4)}, v{va} offset:{off+2048}")
            if last:
                send_partial()
            E(11); C(4); C(5)
            if first and u == 0:
                poll_issue(PR[1])
                for q in range(4): wo_piece(0, q)
            if first and 1 <= u <= 5:
                a(f"s_cmp_lg_u32 s{S_D1}, 0")
                a(f"s_cbranch_scc1 L_CK{u}")
                poll_eval(PR[(u - 1) % 3], 5 if (u <= 2 and "nop3" not in OPT) else 1)
                if u == 5:
                    poll_until("L_P1")
                else:
                    avail()
                    a(f"s_cbranch_scc1 L_GO{u}")
                    poll_issue(PR[(u + 1) % 3])
                    a(f"s_branch L_CK{u}")
                    a.label(f"L_GO{u}")
                qstamp(a, 6)
                kv_dma(S_NXT)
                a(f"s_mov_b32 s{S_D1}, 1")
                a.label(f"L_CK{u}")
            if st and u in (0, 1):
                wo_piece(st, 2 * u)
            if u in (6, 7) and st is None:
                a(f"s_cmp_lg_u32 s{S_KPS}, {u - 6}")
                a(f"s_cbranch_scc1 L_NODMA{u}{sfx}")
                a(f"s_cmp_eq_u32 s{S_REM}, 0")
                a(f"s_cbranch_scc1 L_NODMA{u}{sfx}")
                poll_until(f"L_P2{u}{sfx}")
                kv_dma(S_PRV)
                a.label(f"L_NODMA{u}{sfx}")
            if u in (6, 7) and st is not None and st < 6:
                kv_piece(st, 2 * (u - 6) + 1)
            if u == 7 and st is None:
                a(f"s_mov_b32 s{S_T}, s{S_CUR}")
                a(f"s_mov_b32 s{S_CUR}, s{S_NXT}")
                a(f"s_mov_b32 s{S_NXT}, s{S_PRV}")
                a(f"s_mov_b32 s{S_PRV}, s{S_T}")
                a(f"v_add_u32 v{V_CUR}, s{S_CUR}, v{V_KP}")
                a(f"v_add_u32 v{V_NXT}, s{S_NXT}, v{V_KP}")
                a(f"s_add_u32 s{S_ST}, s{S_ST}, 1")
                a(f"s_cmp_lt_u32 s{S_ST}, 8")
            E(12); E(13); E(14); E(15); C(6); C(7)

    if "solo" in OPT:
        a(f"s_cmp_ge_u32 s{S_W}, 4")
        a("s_cbranch_scc1 L_END")
    stage(True, 0)
    stamp(a, 6)
    qstamp(a, 10)
    dbgt(a, 3)
    for st in range(1, 8):
        stage(False, st)
    a("s_nop 0")
    a.label("L_POST")
    stamp(a, 7)
    rstamp(a, 2)
    if "solo" in OPT:
        stamp_flush(a, 8, S_W)
        a("s_endpgm")
    dbgt(a, 4)
    GX, GW = S[1], KR
    a(f"s_lshr_b32 s{S_C}, s{S_HH}, 2")
    a(f"v_mfma_f32_32x32x16_bf16 {vr(O[1],16)}, {vr(VR+4,4)}, {vr(P+4,4)}, {vr(O[1],16)}")
    a(f"s_lshl_b32 s{S_A}, s{S_QB}, 3")
    a(f"s_add_u32 s{S_C}, s{S_C}, s{S_A}")
    a(f"s_lshl_b32 s{S_A}, s{S_C}, 3")
    a(f"s_add_u32 s{S_A}, s{S_A}, s{S_W}")
    a(f"s_mul_i32 s{S_A}, s{S_A}, {4*896}")
    a(f"v_lshrrev_b32 v6, 4, v{V_LANE}")
    a("v_mul_u32_u24 v6, 896, v6")
    a(f"v_and_b32 v7, 15, v{V_LANE}")
    a("v_lshlrev_b32 v7, 4, v7")
    a("v_add_u32 v6, v6, v7")
    a("s_waitcnt lgkmcnt(0)")
    for q in range(4):
        a(f"buffer_load_dwordx4 {vr(GX+4*q,4)}, v6, s[{SX}:{SX+3}], s{S_A} offen offset:{q*256}")
    for q in range(4):
        a(f"buffer_load_dwordx4 {vr(GW+4*q,4)}, v7, s[{SG}:{SG+3}], 0 offen offset:{q*256}")
    a(f"v_add_u32 v5, s{S_XA}, v{V_L16}")
    a(f"v_mov_b32 v6, {f32hex(2.0**39)}")
    a(f"v_max_f32 v7, v{O[0]+12}, v{O[1]+12}")
    a(f"v_add_f32 v4, v{O[0]+12}, v{O[1]+12}")
    a("v_cmp_nlt_f32 vcc, v7, v6")
    a(f"v_cmp_u_f32 s[{S_A}:{S_A+1}], v4, v4")
    a(f"v_mov_b32 v6, {L_FB}")
    a("v_mov_b32 v7, 1")
    a("s_nop 1")
    a(f"s_or_b32 s{S_A}, vcc_hi, s{S_A+1}")
    a("s_cbranch_scc0 L_NOVOTE")
    a("ds_write_b32 v6, v7")
    a.label("L_NOVOTE")
    a("s_waitcnt lgkmcnt(0)")
    a("s_barrier")
    rstamp(a, 3)
    a("ds_read_b32 v7, v6")
    for q in range(4):
        a(f"ds_read_b128 {vr(S[0]+4*q,4)}, v5 offset:{q*1024}")
    a(f"s_cmp_lg_u32 s{S_FB}, 0")
    a("s_cbranch_scc1 L_FIN")
    a("s_waitcnt lgkmcnt(4)")
    a(f"v_readfirstlane_b32 s{S_A}, v7")
    a("s_nop 3")
    a(f"s_cmp_lg_u32 s{S_A}, 0")
    a("s_cbranch_scc1 L_FALLBACK")
    a.label("L_FIN")
    a("s_waitcnt lgkmcnt(0)")
    for r in range(16):
        a(f"v_add_f32 v{O[1]+r}, v{O[1]+r}, v{S[0]+r}")
    a(f"v_mov_b32 v4, v{O[1]+12}")
    a(f"v_mov_b32 v5, v{O[1]+12}")
    a(f"s_lshl_b32 s{S_A}, s{S_QB}, 3")
    a(f"s_add_u32 s{S_A}, s{S_A}, s{S_T0}")
    a("v_permlane32_swap_b32 v4, v5")
    a(f"s_lshl_b32 s{S_A}, s{S_A}, 5")
    a(f"s_add_u32 s{S_A}, s{S_A}, s{S_HH}")
    a("v_rcp_f32 v4, v5")
    a(f"s_lshl_b32 s{S_B}, s{S_A}, 11")
    a(f"s_add_u32 s{S_B}, s{S_B}, {OF_BASE}")
    for r in range(8):
        a(f"v_mul_f32 v{O[1]+r}, v{O[1]+r}, v4")
    for m in range(4):
        a(f"v_cvt_pk_bf16_f32 v{P+m}, v{O[1]+2*m}, v{O[1]+2*m+1}")
    a(f"buffer_store_dwordx4 {vr(P,4)}, v{V_L16}, s[{SWS}:{SWS+3}], s{S_B} offen sc1")
    for r in range(8, 16):
        a(f"v_mul_f32 v{O[1]+r}, v{O[1]+r}, v4")
    for m in range(4, 8):
        a(f"v_cvt_pk_bf16_f32 v{P+m}, v{O[1]+2*m}, v{O[1]+2*m+1}")
    a("s_mov_b32 exec_lo, 0")
    a(f"v_mov_b32 v{P+6}, 0")
    a(f"v_mov_b32 v{P+7}, 0")
    a("s_mov_b32 exec_lo, -1")
    a(f"buffer_store_dwordx4 {vr(P+4,4)}, v{V_L16}, s[{SWS}:{SWS+3}], s{S_B} offen offset:1024 sc1")
    stamp(a, 8)
    rstamp(a, 4)
    if "nop3" not in OPT:
        a(f"s_lshl_b32 s{S_B}, s{S_A}, 3")
        a(f"s_add_u32 s{S_B}, s{S_B}, {F3_BASE}")
        a(f"s_lshl_b32 s{S_A}, s{S_C}, 5")
        a(f"s_lshl_b32 s{S_T}, s{S_W}, 2")
        a(f"s_add_u32 s{S_A}, s{S_A}, s{S_T}")
        a(f"s_lshl_b32 s{S_T}, s{S_A}, 3")
        a(f"s_add_u32 s{S_T}, s{S_T}, {F3_BASE}")
        a(f"v_and_b32 v7, 3, v{V_LANE}")
        a(f"v_lshl_add_u32 v{V_FP}, v7, 3, s{S_T}")
        a(f"s_lshl_b32 s{S_A}, s{S_A}, 11")
        a(f"s_add_u32 s{S_A}, s{S_A}, {OF_BASE}")
        a("v_mov_b32 v4, 0")
        a("v_mov_b32 v5, 0")
        a("s_waitcnt vmcnt(2)")
        for d in range(0, 16, 2):
            a(f"v_dot2c_f32_bf16 v4, v{GX+d}, v{GW+d}")
            a(f"v_dot2c_f32_bf16 v5, v{GX+d+1}, v{GW+d+1}")
        a(f"v_lshrrev_b32 v6, 4, v{V_LANE}")
        a("v_lshlrev_b32 v6, 2, v6")
        a(f"s_lshl_b32 s{S_T}, s{S_W}, 4")
        a(f"s_add_u32 s{S_T}, s{S_T}, {L_GV}")
        a("v_add_f32 v4, v4, v5")
        a(f"v_add_u32 v6, s{S_T}, v6")
        for sh in (8, 4, 2, 1):
            a("s_nop 1")
            a(f"v_add_f32_dpp v4, v4, v4 row_ror:{sh} row_mask:0xf bank_mask:0xf")
        a(f"v_mul_f32 v4, {f32hex(-math.log2(math.e))}, v4")
        a("v_exp_f32 v4, v4")
        a("v_mov_b32 v7, 0")
        a("v_add_f32 v4, 1.0, v4")
        a("v_rcp_f32 v4, v4")
        a("s_nop 0")
        a("ds_write_b32 v6, v4")
        rstamp(a, 5)
        a("s_waitcnt vmcnt(0)")
        rstamp(a, 6)
        a("s_mov_b64 exec, 1")
        a(f"buffer_store_dwordx2 {vr(V_TAGV,2)}, v7, s[{SWS}:{SWS+3}], s{S_B} offen sc1")
        a("s_mov_b64 exec, -1")
        a("s_waitcnt lgkmcnt(0)")
        a("s_barrier")
        ACC = 8
        OFR = 72
        a(f"v_and_b32 v5, 31, v{V_LANE}")
        a("v_lshlrev_b32 v104, 2, v5")
        a(f"v_add_u32 v104, {L_GV}, v104")
        a("ds_read_b32 v105, v104")
        a(f"s_lshl_b32 s{S_T}, s{S_C}, 5")
        a(f"v_add_u32 v5, s{S_T}, v5")
        a("v_mul_u32_u24 v5, 896, v5")
        a(f"v_lshrrev_b32 v6, 5, v{V_LANE}")
        a("v_lshl_add_u32 v107, v6, 4, v5")
        a(f"s_lshl_b32 s{S_B}, s{S_FT0}, 6")
        a(f"s_lshl_b32 s{S_T}, s{S_W}, 5")
        a(f"s_add_u32 s{S_B}, s{S_B}, s{S_T}")
        a(f"s_and_b32 s{S_C}, s{S_HH}, 2")
        a(f"s_lshr_b32 s{S_T}, s{S_W}, 1")
        a(f"s_add_u32 s{S_C}, s{S_C}, s{S_T}")
        a(f"s_cmp_eq_u32 s{S_C}, 5")
        a(f"s_cselect_b32 s{S_C}, {OOB}, s{S_B}")
        a(f"s_lshl_b32 s{S_T}, s{S_W}, 11")
        a(f"v_add_u32 v108, s{S_T}, v{V_L16}")
        a(f"v_add_u32 v109, 0x10000, v108")
        a(f"s_lshl_b32 s{S_T}, s{S_W}, 14")
        a(f"v_add_u32 v110, s{S_T}, v{V_L16}")
        a(f"s_mov_b32 s{S_SPIN}, {SPIN_MAX}")
        a.label("L_P3")
        a(f"buffer_load_dwordx2 {vr(V_POLL,2)}, v{V_FP}, s[{SWS}:{SWS+3}], 0 offen sc1")
        a(f"s_sub_u32 s{S_SPIN}, s{S_SPIN}, 1")
        a(f"s_cmp_eq_u32 s{S_SPIN}, 0")
        a("s_cbranch_scc1 L_P3_OK")
        a("s_waitcnt vmcnt(0)")
        a(f"v_cmp_eq_u64 vcc, s[{S_TAG}:{S_TAG+1}], {vr(V_POLL,2)}")
        a("s_nop 3")
        a("s_cmp_eq_u64 vcc, -1")
        a("s_cbranch_scc0 L_P3")
        a.label("L_P3_OK")
        stamp(a, 9)
        rstamp(a, 7)
        a(f"s_add_u32 s{S_B}, s{S_A}, 4096")
        for i in range(8):
            a(f"buffer_load_dwordx4 {vr(OFR+4*i,4)}, v{V_L16}, s[{SWS}:{SWS+3}], s{S_A if i < 4 else S_B} offen offset:{(i&3)*1024} sc1")
        for i in range(8):
            a(f"s_waitcnt vmcnt({7-i})")
            for f in range(4):
                c = "0" if i == 0 else vr(ACC + 16*f, 16)
                a(f"v_mfma_f32_32x32x16_bf16 {vr(ACC+16*f,16)}, {ar((i*4+f)*4,4)}, {vr(OFR+4*i,4)}, {c}")
        stamp(a, 10)
        rstamp(a, 8)
        a("s_waitcnt lgkmcnt(0)")
        a("v_sub_f32 v106, 1.0, v105")
        a("s_nop 7")
        for d in range(8):
            va = 108 if d < 4 else 109
            for q in range(2):
                a(f"ds_write_b128 v{va}, {vr(ACC + 8*d + 4*q, 4)} offset:{L_R3 + (d&3)*16384 + q*1024}")
        a("s_waitcnt lgkmcnt(0)")
        rstamp(a, 9)
        a("s_barrier")
        rstamp(a, 10)
        for src in range(8):
            for q in range(2):
                a(f"ds_read_b128 {vr(ACC + 8*src + 4*q, 4)}, v110 offset:{L_R3 + src*2048 + q*1024}")
        for br in range(2):
            b0 = ACC + 32 * br
            a(f"s_waitcnt lgkmcnt({12 - 8*br})")
            for r in range(8):
                a(f"v_add_f32 v{b0+r}, v{b0+r}, v{b0+8+r}")
            a(f"s_waitcnt lgkmcnt({8 - 8*br})")
            for r in range(8):
                a(f"v_add_f32 v{b0+16+r}, v{b0+16+r}, v{b0+24+r}")
            for r in range(8):
                a(f"v_add_f32 v{b0+r}, v{b0+r}, v{b0+16+r}")
        for r in range(8):
            a(f"v_mul_f32 v{ACC+r}, v{ACC+r}, v105")
        for r in range(8):
            a(f"v_fmac_f32 v{ACC+r}, v{ACC+32+r}, v106")
        for m in range(4):
            a(f"v_cvt_pk_bf16_f32 v{OFR+m}, v{ACC+2*m}, v{ACC+2*m+1}")
        a("s_nop 1")
        a(f"v_permlane32_swap_b32 v{OFR}, v{OFR+2}")
        a(f"v_permlane32_swap_b32 v{OFR+1}, v{OFR+3}")
        a(f"buffer_store_dwordx4 {vr(OFR,4)}, v107, s[{SOUT}:{SOUT+3}], s{S_C} offen")
    dbgt_flush(a, S_W)
    stamp_flush(a, 11 if "nop3" not in OPT else 9, S_W)
    a.label("L_END")
    a("s_endpgm")

    a.label("L_TAGSLOW")
    a(f"s_cmp_eq_u32 s{S_SPIN}, 0")
    a("s_cbranch_scc1 L_TAG_OK")
    a(f"buffer_load_dwordx2 {vr(V_TAGV,2)}, v9, s[{SDBG}:{SDBG+3}], 0 offen sc1")
    a("s_branch L_TAG")
    for st in range(6):
        a.label(f"L_SLOW{st}")
        a(f"s_mov_b32 s{S_SPIN}, {SPIN_MAX}")
        a.label(f"L_SLOWL{st}")
        poll_issue(V_POLL)
        a(f"s_sub_u32 s{S_SPIN}, s{S_SPIN}, 1")
        poll_eval(V_POLL)
        a(f"s_bitcmp1_b32 s{S_RDY}, {st + 2}")
        a(f"s_cbranch_scc1 L_FAST{st}")
        a(f"s_cmp_lg_u32 s{S_SPIN}, 0")
        a(f"s_cbranch_scc1 L_SLOWL{st}")
        a(f"s_branch L_FAST{st}")
    a.label("L_LOOP")
    stage(False)
    a("s_cbranch_scc1 L_LOOP")
    send_partial()
    a("s_branch L_POST")

    a.label("L_FALLBACK")
    a(f"s_mov_b32 s{S_FB}, 64")
    a("s_mov_b32 exec_lo, 0")
    for t in range(2):
        a(f"v_mov_b32 v{Q[t]+6}, 0")
        a(f"v_mov_b32 v{Q[t]+7}, 0")
    a("s_mov_b32 exec_lo, -1")
    a("v_mov_b32 v4, 0xff800000")
    a("v_mov_b32 v5, 0xff800000")
    a(f"s_mov_b32 s{S_A}, 0")
    a("s_waitcnt vmcnt(0) lgkmcnt(0)")
    a("s_barrier")
    a.label("L_FBMAX")
    a(f"buffer_load_dwordx4 {vr(KR,4)}, v{V_L16}, s[{SKV}:{SKV+3}], s{S_A} offen sc1")
    a(f"buffer_load_dwordx4 {vr(KR+4,4)}, v{V_L16}, s[{SKV}:{SKV+3}], s{S_A} offen offset:1024 sc1")
    a("s_waitcnt vmcnt(0)")
    for t in range(2):
        a(f"v_mfma_f32_32x32x16_bf16 {vr(S[t],16)}, {vr(KR,4)}, {vr(Q[t],4)}, 0")
        a(f"v_mfma_f32_32x32x16_bf16 {vr(S[t],16)}, {vr(KR+4,4)}, {vr(Q[t]+4,4)}, {vr(S[t],16)}")
    a("s_nop 15")
    for t in range(2):
        for r in range(0, 16, 2):
            a(f"v_max3_f32 v{4+t}, v{4+t}, v{S[t]+r}, v{S[t]+r+1}")
    a(f"s_add_u32 s{S_A}, s{S_A}, 4096")
    a(f"s_cmp_lt_u32 s{S_A}, 262144")
    a("s_cbranch_scc1 L_FBMAX")
    a(f"s_mov_b32 s{S_CUR}, {L_RING[0]}")
    a(f"s_mov_b32 s{S_NXT}, {L_RING[1]}")
    a(f"s_movk_i32 s{S_REM}, 0xff")
    a(f"s_movk_i32 s{S_RDY}, 0xff")
    a(f"s_mov_b32 s{S_C}, 1")
    kv_dma(S_CUR)
    a(f"s_mov_b32 s{S_C}, 2")
    kv_dma(S_NXT)
    a("v_mov_b32 v6, v4")
    a("v_mov_b32 v7, v5")
    a("s_nop 1")
    a("v_permlane32_swap_b32 v4, v6")
    a("v_permlane32_swap_b32 v5, v7")
    a("s_nop 0")
    a("v_max_f32 v4, v4, v6")
    a("v_max_f32 v5, v5, v7")
    split_m(4, Q[0] + 6)
    split_m(5, Q[1] + 6)
    a("s_waitcnt vmcnt(4)")
    a("s_barrier")
    a("s_branch L_PRIME")
    a.label("L_CODE_END")

    nsg = 102 if STAMP or "dbgt" in OPT else 78
    return a.text() + f"""
.section .rodata,"a"
.p2align 6
.amdhsa_kernel {KNAME}
  .amdhsa_next_free_vgpr 256
  .amdhsa_next_free_sgpr {nsg}
  .amdhsa_accum_offset 128
  .amdhsa_group_segment_fixed_size 0
  .amdhsa_kernarg_size 80
  .amdhsa_user_sgpr_count 2
  .amdhsa_user_sgpr_kernarg_segment_ptr 1
  .amdhsa_system_sgpr_workgroup_id_x 1
.end_amdhsa_kernel
"""

def main():
    global STAMP
    if len(sys.argv) > 2 and sys.argv[2] == "stamp": STAMP = True
    OPT.update(sys.argv[3:])
    hdr = open("cdna_kernels/" + NAME + ".s.ref").read().split("\n")
    top = [l for l in hdr if l.startswith(";") and "@launch" not in l and "Override" not in l and "grid=ceil" not in l]
    out = "\n".join(top[:11]) + "\n"
    out += f"; @launch grid=(256,1,1) block=(512,1,1) lds={LDS_BYTES}\n"
    out += '.amdgcn_target "amdgcn-amd-amdhsa--gfx950"\n'
    out += gen()
    path = sys.argv[1] if len(sys.argv) > 1 else "cdna_kernels/" + NAME + ".s"
    open(path, "w").write(out)

if __name__ == "__main__":
    main()
```

```python
import struct, sys, math

NAME = "gated_mix__softmax_full_mha__softmax_full_mha__prompt"
KNAME = NAME + "_kernel"

def f32hex(x):
    return "0x%08x" % struct.unpack("<I", struct.pack("<f", x))[0]

class Asm:
    def __init__(self):
        self.lines = []
    def __call__(self, s):
        for ln in s.strip("\n").split("\n"):
            self.lines.append("    " + ln.strip())
    def label(self, l):
        self.lines.append(l + ":")
    def raw(self, s):
        self.lines.append(s)
    def text(self):
        return "\n".join(self.lines) + "\n"

class Cnt:
    def __init__(self):
        self.q = []
    def issue(self, tag, n=1):
        for _ in range(n):
            self.q.append(tag)
    def need(self, *tags):
        idx = -1
        for i, t in enumerate(self.q):
            if t in tags:
                idx = i
        if idx < 0:
            return None
        n = len(self.q) - 1 - idx
        self.q = self.q[idx + 1:]
        return n
    def clear(self):
        self.q = []

def vr(lo, n):
    return f"v[{lo}:{lo+n-1}]"
def ar(lo, n):
    return f"a[{lo}:{lo+n-1}]"

KV_BASE = 0
OF_BASE = 8 << 20
F2_BASE = 12 << 20
F3_BASE = (12 << 20) + (64 << 10)
WS_SIZE = 13 << 20
X_BYTES = 2048 * 448 * 2
W_BYTES = 448 * 1344 * 2
WO_BYTES = 448 * 448 * 2
OUT_BYTES = 2048 * 448 * 2
OOB = 0x40000000
QSCALE = math.log2(math.e) / math.sqrt(28.0)
SPIN_MAX = 200000

L_W = 0
L_XB = 86016
L_XA = 126976
L_RING = [L_XA, 0, 32768]
L_WO = 65536
L_R3 = 0
L_RED = L_XA
L_FB = L_XA + 32768
L_GV = L_FB + 64
L_TAG = L_GV + 128
LDS_BYTES = L_TAG + 64

STAMP = False
OPT = set()
STAMP_BASE = 64 << 20
STR = [78 + 2*i for i in range(12)] + [36, 38]
def dbgt(a, slot):
    if "dbgt" not in OPT: return
    a(f"s_memrealtime s[{80+2*slot}:{81+2*slot}]")
def dbgt_flush(a, s_w):
    if "dbgt" not in OPT: return
    a("s_waitcnt vmcnt(0)")
    dbgt(a, 5)
    a("s_waitcnt lgkmcnt(0)")
    a("s_lshl_b32 s78, s2, 3")
    a(f"s_add_u32 s78, s78, s{s_w}")
    a("s_mov_b32 s79, 0x40000000")
    a("s_cmp_eq_u32 s78, 40")
    a("s_cselect_b32 s79, 16, s79")
    a("s_cmp_eq_u32 s78, 1607")
    a("s_cselect_b32 s79, 40, s79")
    a("v_mov_b32 v1, 0")
    a("s_mov_b64 exec, 1")
    for i in range(6):
        a(f"v_mov_b32 v2, s{80+2*i}")
        a(f"buffer_store_dword v2, v1, s[32:35], s79 offen offset:{4*i}")
def qstamp(a, i):
    if STAMP and "qst" in OPT:
        a(f"s_memtime s[{STR[i]}:{STR[i]+1}]")
def rstamp(a, i):
    if STAMP and "rst" in OPT:
        a(f"s_memtime s[{STR[i]}:{STR[i]+1}]")
def pstamp(a, i):
    if STAMP and "pst" in OPT:
        a(f"s_memtime s[{STR[i]}:{STR[i]+1}]")
def stamp(a, i, real=False):
    if not STAMP: return
    if ("pst" in OPT or "qst" in OPT or "rst" in OPT) and i >= 2: return
    a(f"{'s_memrealtime' if real else 's_memtime'} s[{STR[i]}:{STR[i]+1}]")
def stamp_flush(a, n, s_w):
    if not STAMP: return
    a("s_waitcnt vmcnt(0) lgkmcnt(0)")
    a(f"s_memtime s[{STR[n]}:{STR[n]+1}]")
    a(f"s_memrealtime s[{STR[n+1]}:{STR[n+1]+1}]")
    a("s_waitcnt lgkmcnt(0)")
    a("s_mov_b32 s14, 0x10000000")
    a("s_lshl_b32 s59, s2, 3")
    a(f"s_add_u32 s59, s59, s{s_w}")
    a("s_lshl_b32 s59, s59, 7")
    a(f"s_add_u32 s59, s59, {STAMP_BASE}")
    a("v_mov_b32 v1, 0")
    a("s_mov_b64 exec, 1")
    a("s_getreg_b32 s60, hwreg(HW_REG_XCC_ID)")
    a("v_mov_b32 v2, s60")
    a("v_mov_b32 v3, 0")
    a("buffer_store_dwordx2 v[2:3], v1, s[12:15], s59 offen offset:120")
    for i in range(n + 2):
        a(f"v_mov_b32 v2, s{STR[i]}")
        a(f"v_mov_b32 v3, s{STR[i]+1}")
        a(f"buffer_store_dwordx2 v[2:3], v1, s[12:15], s59 offen offset:{8*i}")
        a("s_nop 1")

def srd(a, d, lo, hi, nbytes):
    a(f"s_mov_b32 s{d}, s{lo}")
    a(f"s_mov_b32 s{d+1}, s{hi}")
    a(f"s_mov_b32 s{d+2}, {nbytes}")
    a(f"s_mov_b32 s{d+3}, 0x00020000")

def gen():
    a = Asm()
    a.raw(".text")
    a.raw(f".globl {KNAME}")
    a.raw(".p2align 8")
    a.raw(f".type {KNAME},@function")
    a.label(KNAME)
    SX, SW, SWS, SWO, SG, SKV, SOUT, SDBG = 4, 8, 12, 16, 20, 24, 28, 32
    S_HH, S_QB, S_W, S_T, S_TT, S_R = 56, 57, 58, 59, 60, 61
    S_A, S_B, S_C = 62, 63, 64
    S_XA, S_XB = 65, 66
    S_TAG = 68
    S_RDY = 70
    S_ST, S_CUR, S_NXT, S_PRV = 71, 72, 73, 74
    S_SPIN = 75
    S_W4K = 76
    S_FB = 77
    V_LANE, V_L16 = 2, 3
    a("s_cmp_ge_u32 s2, 256")
    a("s_cbranch_scc1 L_END")
    stamp(a, 0); stamp(a, 1, True); dbgt(a, 0)
    a("s_load_dwordx16 s[36:51], s[0:1], 0")
    a("s_load_dwordx4 s[52:55], s[0:1], 64")
    a(f"s_memrealtime s[{S_TAG}:{S_TAG+1}]")
    LH = 3 if "map2" in OPT else 2 if "map1" in OPT else 5 if "map4" in OPT else 4
    a(f"s_and_b32 s{S_T}, s2, 7")
    a(f"s_lshr_b32 s{S_A}, s2, 3")
    a(f"s_and_b32 s{S_HH}, s{S_T}, {(32 >> LH) - 1}")
    a(f"s_lshl_b32 s{S_HH}, s{S_HH}, {LH}")
    a(f"s_and_b32 s{S_B}, s{S_A}, {(1 << LH) - 1}")
    a(f"s_add_u32 s{S_HH}, s{S_HH}, s{S_B}")
    a(f"s_lshr_b32 s{S_QB}, s{S_T}, {5 - LH}")
    a(f"s_lshl_b32 s{S_QB}, s{S_QB}, {5 - LH}")
    a(f"s_lshr_b32 s{S_A}, s{S_A}, {LH}")
    a(f"s_add_u32 s{S_QB}, s{S_QB}, s{S_A}")
    if LH == 2:
        a(f"s_lshl_b32 s{S_B}, s{S_B}, 1")
    else:
        a(f"s_and_b32 s{S_B}, s{S_B}, 7")
        a(f"s_lshl_b32 s{S_A}, s{S_A}, 1")
    a(f"s_add_u32 s{S_R}, s{S_A}, s{S_B}")
    a(f"s_add_u32 s{S_R}, s{S_R}, s{S_T}")
    a(f"s_mul_i32 s{S_A}, s{S_R}, 37")
    a(f"s_lshr_b32 s{S_A}, s{S_A}, 8")
    a(f"s_mul_i32 s{S_A}, s{S_A}, 7")
    a(f"s_sub_u32 s{S_R}, s{S_R}, s{S_A}")
    if "norot" in OPT: a(f"s_mov_b32 s{S_R}, 0")
    a("v_lshrrev_b32 v1, 6, v0")
    a(f"v_and_b32 v{V_LANE}, 63, v0")
    a(f"v_readfirstlane_b32 s{S_W}, v1")
    a(f"v_lshlrev_b32 v{V_L16}, 4, v{V_LANE}")
    a(f"s_lshl_b32 s{S_TT}, s{S_QB}, 3")
    a("s_nop 2")
    a(f"s_add_u32 s{S_TT}, s{S_TT}, s{S_W}")
    a(f"s_lshl_b32 s{S_W4K}, s{S_W}, 12")
    a(f"s_add_u32 s{S_XA}, s{S_W4K}, {L_XA}")
    a(f"s_add_u32 s{S_XB}, s{S_W4K}, {L_XB}")

    ACCQ, ACCK, ACCV = 16, 32, 48
    XF = 64
    V_XD, V_XR, V_WD, V_WR = 96, 100, 104, 105
    V_CUR, V_NXT, V_DM, V_FP, V_WOD, V_WOR, V_TAGV, V_KP, V_QR0, V_QR1, V_POLL = 112, 113, 114, 115, 116, 117, 118, 120, 121, 122, 124
    a(f"v_lshrrev_b32 v4, 3, v{V_LANE}")
    a(f"v_and_b32 v5, 7, v{V_LANE}")
    a(f"s_lshl_b32 s{S_T}, s{S_TT}, 5")
    a(f"v_add_u32 v6, s{S_T}, v4")
    a("v_mul_u32_u24 v6, 896, v6")
    a("v_lshrrev_b32 v7, 1, v4")
    a("v_xor_b32 v8, v7, v5")
    a("v_or_b32 v7, 4, v7")
    a("v_xor_b32 v7, v7, v5")
    a(f"v_lshl_add_u32 v{V_XD}, v8, 4, v6")
    a("v_lshl_add_u32 v7, v7, 4, v6")
    a(f"v_add_u32 v{V_XD+1}, {8*896 - 1024}, v7")
    a(f"v_add_u32 v{V_XD+2}, {16*896 - 2048}, v{V_XD}")
    a(f"v_add_u32 v{V_XD+3}, {24*896 - 3072}, v7")
    a(f"v_mul_u32_u24 v5, 43, v{V_LANE}")
    a("v_lshrrev_b32 v5, 9, v5")
    a("v_mul_u32_u24 v6, 12, v5")
    a(f"v_sub_u32 v6, v{V_LANE}, v6")
    a("v_lshl_add_u32 v5, v1, 3, v5")
    a("v_mul_u32_u24 v5, 2688, v5")
    a("v_lshrrev_b32 v7, 2, v6")
    a("v_mul_u32_u24 v7, 896, v7")
    a("v_add_u32 v5, v5, v7")
    a("v_and_b32 v6, 3, v6")
    a("v_lshl_add_u32 v5, v6, 4, v5")
    a(f"s_and_b32 s{S_T}, s{S_HH}, 15")
    a(f"s_mul_i32 s{S_T}, s{S_T}, 56")
    a(f"v_add_u32 v{V_WD}, s{S_T}, v5")
    S_W768 = 67
    a(f"s_mul_i32 s{S_W768}, s{S_W}, 1536")
    pstamp(a, 2)
    a("s_waitcnt lgkmcnt(0)")
    pstamp(a, 3)
    srd(a, SX, 36, 37, X_BYTES)
    a(f"s_cmp_ge_u32 s{S_HH}, 16")
    a(f"s_cselect_b32 s{SW}, s44, s38")
    a(f"s_cselect_b32 s{SW+1}, s45, s39")
    a(f"s_mov_b32 s{SW+2}, {W_BYTES}")
    a(f"s_mov_b32 s{SW+3}, 0x00020000")

    vm = Cnt()
    lg = Cnt()
    def wait_vm(*tags):
        n = vm.need(*tags)
        if n is not None:
            a(f"s_waitcnt vmcnt({n})")
    def wait_lg(*tags):
        n = lg.need(*tags)
        if n is not None:
            a(f"s_waitcnt lgkmcnt({min(n, 15)})")
    def chunk_of(s):
        a(f"s_add_u32 s{S_A}, s{S_R}, {s}")
        a(f"s_sub_u32 s{S_B}, s{S_A}, 7")
        a(f"s_min_u32 s{S_A}, s{S_A}, s{S_B}")
    def dma_x(s):
        chunk_of(s)
        base = S_XA if (s & 1) == 0 else S_XB
        a(f"s_mov_b32 m0, s{base}")
        a(f"s_lshl_b32 s{S_B}, s{S_A}, 7")
        for i in range(4):
            a(f"buffer_load_dwordx4 v{V_XD+i}, s[{SX}:{SX+3}], s{S_B} offen offset:{i*1024} lds")
            vm.issue(f"X{s}")
    def dma_w(s):
        chunk_of(s)
        a("s_mov_b32 exec_hi, 0xffff")
        a(f"s_mul_i32 s{S_A}, s{S_A}, {64*2688}")
        a(f"s_add_u32 m0, s{S_W768}, {64*s*192}")
        a(f"s_add_u32 s{S_B}, s{S_A}, {4*2688 - 768}")
        a(f"buffer_load_dwordx4 v{V_WD}, s[{SW}:{SW+3}], s{S_A} offen lds")
        a(f"buffer_load_dwordx4 v{V_WD}, s[{SW}:{SW+3}], s{S_B} offen offset:768 lds")
        vm.issue(f"W{s}", 2)
        a("s_mov_b32 exec_hi, -1")

    dma_x(0)
    dma_w(0)
    pstamp(a, 4)
    dma_x(1)
    dma_w(1)
    pstamp(a, 5)
    srd(a, SG, 48, 49, 896)
    srd(a, SWS, 54, 55, WS_SIZE)
    srd(a, SOUT, 50, 51, OUT_BYTES)
    srd(a, SDBG, 52, 53, 256)
    a(f"s_cmp_ge_u32 s{S_W}, 4")
    a(f"s_cselect_b32 s{SWO}, s46, s40")
    a(f"s_cselect_b32 s{SWO+1}, s47, s41")
    a(f"s_sub_u32 s{SWO}, s{SWO}, 4096")
    a(f"s_subb_u32 s{SWO+1}, s{SWO+1}, 0")
    a(f"s_mov_b32 s{SWO+2}, {WO_BYTES + 4096}")
    a(f"s_mov_b32 s{SWO+3}, 0x00020000")
    a(f"s_lshl_b32 s{S_T}, s{S_HH}, 18")
    a(f"s_add_u32 s{SKV}, s54, s{S_T}")
    a(f"s_addc_u32 s{SKV+1}, s55, 0")
    a(f"s_mov_b32 s{SKV+2}, 262144")
    a(f"s_mov_b32 s{SKV+3}, 0x00020000")
    a(f"s_or_b32 s{S_TAG}, s{S_TAG}, 1")
    a(f"s_or_b32 s{S_T}, s2, s{S_W}")
    a(f"s_cmp_lg_u32 s{S_T}, 0")
    a("s_cbranch_scc1 L_NOTAG")
    a(f"v_mov_b32 v4, s{S_TAG}")
    a(f"v_mov_b32 v5, s{S_TAG+1}")
    a("v_mov_b32 v6, 0")
    a("s_mov_b64 exec, 1")
    a(f"buffer_store_dwordx2 v[4:5], v6, s[{SDBG}:{SDBG+3}], 0 offen sc1")
    a("s_mov_b64 exec, -1")
    a.label("L_NOTAG")
    if "etouch" in OPT:
        a(f"s_and_b32 s{S_T}, s{S_W}, 3")
        a(f"s_cmp_lg_u32 s{S_T}, 3")
        a("s_cbranch_scc1 L_NOTOUCH")
        a("v_mov_b32 v6, 0")
        a(f"s_lshl_b32 s{S_T}, s{S_TT}, 12")
        a("s_mov_b64 exec, 1")
        a(f"buffer_load_dword v123, v6, s[{SKV}:{SKV+3}], s{S_T} offen")
        a(f"s_movk_i32 s{S_T}, 4096")
        a(f"buffer_load_dword v123, v6, s[{SWO}:{SWO+3}], s{S_T} offen")
        a(f"s_mov_b32 s{S_T}, {F3_BASE + 32768}")
        a(f"buffer_load_dword v123, v6, s[{SWS}:{SWS+3}], s{S_T} offen")
        a(f"s_lshl_b32 s{S_T}, s{S_QB}, 8")
        a(f"s_add_u32 s{S_T}, s{S_T}, s{S_HH}")
        a(f"s_lshl_b32 s{S_T}, s{S_T}, 11")
        a(f"s_add_u32 s{S_T}, s{S_T}, {OF_BASE}")
        a(f"buffer_load_dword v123, v6, s[{SWS}:{SWS+3}], s{S_T} offen")
        a(f"s_mul_i32 s{S_T}, s{S_QB}, {256*896}")
        a(f"buffer_load_dword v123, v6, s[{SOUT}:{SOUT+3}], s{S_T} offen")
        a(f"buffer_load_dword v123, v6, s[{SG}:{SG+3}], 0 offen")
        a("s_mov_b64 exec, -1")
        a.label("L_NOTOUCH")
    if "pf" in OPT:
        a(f"s_cmp_lg_u32 s{S_W}, 6")
        a("s_cbranch_scc1 L_NOPF")
        a("s_getpc_b64 s[40:41]")
        a.label("L_PC")
        a(f"s_sub_u32 s40, s40, L_PC-{KNAME}")
        a("s_subb_u32 s41, s41, 0")
        a(f"s_mov_b32 s42, L_CODE_END-{KNAME}")
        a("s_mov_b32 s43, 0x00020000")
        a(f"s_lshr_b32 s{S_T}, s2, 3")
        a(f"s_lshl_b32 s{S_T}, s{S_T}, 10")
        a(f"buffer_load_dwordx4 v[12:15], v{V_L16}, s[40:43], s{S_T} offen")
        a.label("L_NOPF")
    a(f"v_and_b32 v4, 31, v{V_LANE}")
    a(f"v_lshrrev_b32 v5, 5, v{V_LANE}")
    a("v_lshrrev_b32 v6, 1, v4")
    a("v_and_b32 v6, 7, v6")
    a("v_lshlrev_b32 v7, 7, v4")
    a(f"v_add_u32 v7, s{S_XB}, v7")
    for j in range(4):
        a(f"v_add_u32 v8, {2*j}, v5")
        a("v_xor_b32 v8, v8, v6")
        a(f"v_lshl_add_u32 v{V_XR+j}, v8, 4, v7")
    a(f"v_bfe_u32 v6, v{V_LANE}, 2, 2")
    a("v_lshl_add_u32 v6, v5, 3, v6")
    a("v_mul_u32_u24 v6, 192, v6")
    a(f"v_bfe_u32 v7, v{V_LANE}, 4, 1")
    a("v_lshl_add_u32 v6, v7, 5, v6")
    a(f"v_and_b32 v7, 3, v{V_LANE}")
    a(f"v_lshl_add_u32 v{V_WR}, v7, 3, v6")
    a(f"v_add_u32 v{V_WR+1}, {14*3072}, v{V_WR}")
    S_T0, S_FT0, S_WOM, S_WOG, S_WOX, S_KPS = 44, 3, 45, 46, 47, 48
    a(f"s_and_b32 s{S_A}, s{S_W}, 3")
    a(f"s_lshr_b32 s{S_B}, s{S_W}, 2")
    a(f"s_mov_b32 s{S_KPS}, s{S_B}")
    a(f"s_lshl_b32 s{S_T}, s{S_A}, 1")
    a(f"s_add_u32 s{S_T0}, s{S_T}, s{S_B}")
    a(f"s_lshl_b32 s{S_T}, s{S_T0}, 12")
    a(f"s_add_u32 s{S_T}, s{S_T}, {L_XB}")
    a(f"v_add_u32 v{V_QR0}, s{S_T}, v{V_L16}")
    a(f"s_xor_b32 s{S_T}, s{S_T0}, 1")
    a(f"s_lshl_b32 s{S_T}, s{S_T}, 12")
    a(f"s_add_u32 s{S_T}, s{S_T}, {L_XB}")
    a(f"v_add_u32 v{V_QR1}, s{S_T}, v{V_L16}")
    a(f"s_lshl_b32 s{S_T}, s{S_B}, 12")
    a(f"v_add_u32 v{V_KP}, s{S_T}, v{V_L16}")
    a(f"v_add_u32 v{V_DM}, s{S_W4K}, v{V_L16}")
    a(f"s_lshl_b32 s{S_T}, s{S_HH}, 3")
    a(f"s_add_u32 s{S_T}, s{S_T}, s{S_W}")
    a(f"s_lshl_b32 s{S_T}, s{S_T}, 6")
    a(f"s_add_u32 s{S_T}, s{S_T}, {F2_BASE}")
    a(f"v_add_u32 v5, s{S_QB}, v{V_LANE}")
    a("v_and_b32 v5, 7, v5")
    a(f"v_lshl_add_u32 v{V_FP}, v5, 3, s{S_T}")
    a(f"s_mov_b32 s{S_FB}, 0")
    a(f"s_mov_b32 s{S_RDY}, 1")
    a(f"s_and_b32 s{S_T}, s{S_HH}, 3")
    a(f"s_lshl_b32 s{S_FT0}, s{S_T}, 2")
    a(f"s_cmp_eq_u32 s{S_T}, 3")
    a(f"s_cselect_b32 s{S_FT0}, 11, s{S_FT0}")
    a(f"v_lshrrev_b32 v4, 4, v{V_LANE}")
    a(f"v_mul_u32_u24 v5, {4*896}, v4")
    a(f"v_and_b32 v6, 15, v{V_LANE}")
    a("v_lshl_add_u32 v5, v6, 4, v5")
    a(f"s_lshl_b32 s{S_T}, s{S_FT0}, 6")
    a(f"v_add_u32 v{V_WOD}, s{S_T}, v5")
    a(f"s_mul_i32 s{S_WOM}, s{S_W}, 4352")
    a(f"s_add_u32 s{S_WOM}, s{S_WOM}, {L_WO}")
    a(f"v_bfe_u32 v4, v{V_LANE}, 2, 2")
    a("v_mul_u32_u24 v4, 1088, v4")
    a(f"v_lshrrev_b32 v5, 5, v{V_LANE}")
    a("v_lshl_add_u32 v4, v5, 8, v4")
    a(f"v_bfe_u32 v6, v{V_LANE}, 4, 1")
    a("v_lshl_add_u32 v4, v6, 5, v4")
    a(f"v_and_b32 v6, 3, v{V_LANE}")
    a("v_lshl_add_u32 v4, v6, 3, v4")
    a(f"v_add_u32 v{V_WOR}, s{S_WOM}, v4")
    a(f"s_mul_i32 s{S_WOG}, s{S_A}, {4*28*896}")
    a(f"s_add_u32 s{S_WOG}, s{S_WOG}, 4096")
    a(f"s_mov_b32 s{S_WOX}, {16*896}")
    a(f"v_mov_b32 v6, {L_FB}")
    a("v_mov_b32 v7, 0")
    a("ds_write_b32 v6, v7")
    for r in range(16, 64):
        a(f"v_mov_b32 v{r}, 0")

    def read_x(s):
        off = (L_XA - L_XB) if (s & 1) == 0 else 0
        for j in range(4):
            a(f"ds_read_b128 {vr(XF + (s&1)*16 + 4*j, 4)}, v{V_XR+j} offset:{off}")
            lg.issue(f"XR{s}")
    def read_w(ks):
        base = V_WR if ks < 14 else V_WR + 1
        off = (ks % 14) * 3072
        st = ks & 1
        for seg in (1, 2, 0):
            d = st * 12 + seg * 4
            a(f"ds_read_b64_tr_b16 {ar(d,2)}, v{base} offset:{off + seg*64}")
            a(f"ds_read_b64_tr_b16 {ar(d+2,2)}, v{base} offset:{off + seg*64 + 768}")
            lg.issue(f"WR{ks}", 2)

    stamp(a, 2)
    pstamp(a, 6)
    wait_vm("X0")
    read_x(0)
    wait_vm("W0")
    pstamp(a, 7)
    a("s_barrier")
    pstamp(a, 8)
    stamp(a, 3)
    dbgt(a, 1)
    read_w(0)
    wait_lg("XR0")
    dma_x(2)
    dma_w(2)
    pstamp(a, 9)
    TKS = 17
    for o in OPT:
        if o.startswith("tks"): TKS = int(o[3:])
    for ks in range(28):
        s, j = divmod(ks, 4)
        if j == 2 and s + 1 < 7:
            wait_vm(f"X{s+1}")
            read_x(s + 1)
        if j == 3 and s + 1 < 7:
            wait_vm(f"W{s+1}")
            a("s_barrier")
        if ks + 1 < 28:
            read_w(ks + 1)
        wait_lg(f"WR{ks}", f"XR{s}")
        st = ks & 1
        x = vr(XF + (s & 1) * 16 + 4 * j, 4)
        w = lambda seg: ar(st * 12 + seg * 4, 4)
        a(f"v_mfma_f32_32x32x16_bf16 {vr(ACCK,16)}, {w(1)}, {x}, {vr(ACCK,16)}")
        a(f"v_mfma_f32_32x32x16_bf16 {vr(ACCV,16)}, {x}, {w(2)}, {vr(ACCV,16)}")
        a(f"v_mfma_f32_32x32x16_bf16 {vr(ACCQ,16)}, {w(0)}, {x}, {vr(ACCQ,16)}")
        if j == 3 and s + 3 < 7:
            wait_lg(f"XR{s+1}")
            dma_x(s + 3)
            dma_w(s + 3)
        if ks == 17 and "wpf" in OPT:
            a(f"s_lshr_b32 s{S_A}, s{S_HH}, 2")
            a(f"s_and_b32 s{S_A}, s{S_A}, 3")
            a(f"s_mul_i32 s{S_A}, s{S_A}, {28*896}")
            a(f"s_and_b32 s{S_B}, s{S_QB}, 1")
            a(f"s_mul_i32 s{S_B}, s{S_B}, {16*896}")
            a(f"s_add_u32 s{S_A}, s{S_A}, s{S_B}")
            a(f"s_add_u32 s{S_A}, s{S_A}, s{S_WOG}")
            for q in range(4):
                a(f"buffer_load_dword v123, v{V_WOD}, s[{SWO}:{SWO+3}], s{S_A} offen offset:{q*896}")
            vm.issue("PF", 4)
        if ks == TKS and "tlb" in OPT:
            a(f"s_and_b32 s{S_T}, s{S_W}, 3")
            a(f"s_cmp_eq_u32 s{S_T}, 3")
            a(f"s_cselect_b32 s{S_T}, 0, {OOB}")
            a(f"v_mov_b32 v6, s{S_T}")
            a(f"s_lshl_b32 s{S_T}, s{S_TT}, 12")
            a("s_mov_b64 exec, 1")
            a(f"buffer_load_dword v123, v6, s[{SKV}:{SKV+3}], s{S_T} offen")
            a(f"s_movk_i32 s{S_T}, 4096")
            a(f"buffer_load_dword v123, v6, s[{SWO}:{SWO+3}], s{S_T} offen")
            a(f"s_mov_b32 s{S_T}, {F3_BASE + 32768}")
            a(f"buffer_load_dword v123, v6, s[{SWS}:{SWS+3}], s{S_T} offen")
            a(f"s_lshl_b32 s{S_T}, s{S_QB}, 8")
            a(f"s_add_u32 s{S_T}, s{S_T}, s{S_HH}")
            a(f"s_lshl_b32 s{S_T}, s{S_T}, 11")
            a(f"s_add_u32 s{S_T}, s{S_T}, {OF_BASE}")
            a(f"buffer_load_dword v123, v6, s[{SWS}:{SWS+3}], s{S_T} offen")
            a(f"s_mul_i32 s{S_T}, s{S_QB}, {256*896}")
            a(f"buffer_load_dword v123, v6, s[{SOUT}:{SOUT+3}], s{S_T} offen")
            a(f"buffer_load_dword v123, v6, s[{SG}:{SG+3}], 0 offen")
            a("s_mov_b64 exec, -1")
            vm.issue("TOUCH", 6)
        if ks == 20:
            a("v_mov_b32 v9, 0")
            a(f"buffer_load_dwordx2 {vr(V_TAGV,2)}, v9, s[{SDBG}:{SDBG+3}], 0 offen sc1")
            vm.issue("TAG")
    stamp(a, 4)
    qstamp(a, 2)
    dbgt(a, 2)
    pstamp(a, 10)
    PK = 64
    a(f"s_lshl_b32 s{S_A}, s{S_TT}, 12")
    a(f"v_add_u32 v4, s{S_XA}, v{V_L16}")
    a(f"v_add_u32 v5, s{S_XB}, v{V_L16}")
    a(f"s_mov_b32 s{S_B}, {f32hex(QSCALE)}")
    a("s_nop 5")
    for m in range(8):
        a(f"v_cvt_pk_bf16_f32 v{PK+m}, v{ACCK+2*m}, v{ACCK+2*m+1}")
    a("s_mov_b32 exec_lo, 0")
    a(f"v_mov_b32 v{PK+6}, 0x3f803f80")
    a(f"v_mov_b32 v{PK+7}, 0x00003f80")
    a("s_mov_b32 exec_lo, -1")
    for m in range(2):
        a(f"buffer_store_dwordx4 {vr(PK+4*m,4)}, v{V_L16}, s[{SKV}:{SKV+3}], s{S_A} offen offset:{1024*m} sc1")
    for r in range(16):
        a(f"v_mul_f32 v{ACCQ+r}, s{S_B}, v{ACCQ+r}")
    for m in range(8):
        a(f"v_cvt_pk_bf16_f32 v{PK+16+m}, v{ACCQ+2*m}, v{ACCQ+2*m+1}")
    a("s_mov_b32 exec_lo, 0")
    a(f"v_mov_b32 v{PK+16+6}, 0")
    a(f"v_mov_b32 v{PK+16+7}, 0")
    a("s_mov_b32 exec_lo, -1")
    SD = ACCK
    a(f"v_mfma_f32_32x32x16_bf16 {vr(SD,16)}, {vr(PK,4)}, {vr(PK+16,4)}, 0")
    a(f"v_mfma_f32_32x32x16_bf16 {vr(SD,16)}, {vr(PK+4,4)}, {vr(PK+20,4)}, {vr(SD,16)}")
    for m in range(8):
        a(f"v_cvt_pk_bf16_f32 v{PK+8+m}, v{ACCV+2*m}, v{ACCV+2*m+1}")
    if "vzero" in OPT:
        a("s_mov_b32 exec_lo, 0xe0000000")
        a("s_mov_b32 exec_hi, 0xe0000000")
        for m in range(8):
            a(f"v_mov_b32 v{PK+8+m}, 0")
    a("s_mov_b32 exec_lo, 0x10000000")
    a("s_mov_b32 exec_hi, 0x10000000")
    for m in range(8):
        a(f"v_mov_b32 v{PK+8+m}, 0x3f803f80")
    a("s_mov_b64 exec, -1")
    for m in range(2, 4):
        a(f"buffer_store_dwordx4 {vr(PK+4*m,4)}, v{V_L16}, s[{SKV}:{SKV+3}], s{S_A} offen offset:{1024*m} sc1")
    for m in range(4):
        a(f"ds_write_b128 v4, {vr(PK+4*m,4)} offset:{1024*m}")
    a(f"ds_write_b128 v5, {vr(PK+16,4)}")
    def split_m(m, q6):
        a(f"v_sub_f32 v{m}, 0, v{m}")
        a(f"v_and_b32 v6, 0xffff0000, v{m}")
        a(f"v_sub_f32 v{m}, v{m}, v6")
        a(f"v_and_b32 v7, 0xffff0000, v{m}")
        a(f"v_sub_f32 v{m}, v{m}, v7")
        a("v_lshrrev_b32 v6, 16, v6")
        a("s_mov_b32 exec_lo, 0")
        a(f"v_or_b32 v{q6}, v6, v7")
        a(f"v_lshrrev_b32 v{q6+1}, 16, v{m}")
        a("s_mov_b32 exec_lo, -1")
    a(f"v_max3_f32 v4, v{SD}, v{SD+1}, v{SD+2}")
    a(f"v_max3_f32 v6, v{SD+3}, v{SD+4}, v{SD+5}")
    a(f"v_max3_f32 v4, v4, v{SD+6}, v{SD+7}")
    a(f"v_max3_f32 v6, v6, v{SD+8}, v{SD+9}")
    a(f"v_max3_f32 v4, v4, v{SD+10}, v{SD+11}")
    a(f"v_max3_f32 v6, v6, v{SD+12}, v{SD+13}")
    a(f"v_max3_f32 v4, v4, v{SD+14}, v{SD+15}")
    a("v_max_f32 v4, v4, v6")
    a("v_mov_b32 v6, v4")
    a("s_nop 1")
    a("v_permlane32_swap_b32 v4, v6")
    a("s_nop 0")
    a("v_max_f32 v4, v4, v6")
    split_m(4, PK + 16 + 6)
    a(f"ds_write_b128 v5, {vr(PK+20,4)} offset:1024")
    qstamp(a, 3)
    a(f"s_mov_b32 s{S_SPIN}, {SPIN_MAX}")
    a.label("L_TAG")
    a("s_waitcnt vmcnt(0)")
    a(f"v_readfirstlane_b32 s{S_TAG}, v{V_TAGV}")
    a(f"v_readfirstlane_b32 s{S_TAG+1}, v{V_TAGV+1}")
    a(f"s_sub_u32 s{S_SPIN}, s{S_SPIN}, 1")
    a(f"s_cmp_eq_u32 s{S_TAG}, 0")
    a("s_cbranch_scc1 L_TAGSLOW")
    a.label("L_TAG_OK")
    qstamp(a, 4)
    a("s_mov_b64 exec, 1")
    a(f"buffer_store_dwordx2 {vr(V_TAGV,2)}, v{V_FP}, s[{SWS}:{SWS+3}], 0 offen sc1")
    a("s_mov_b64 exec, -1")
    a("s_waitcnt lgkmcnt(0)")
    a("s_barrier")
    lg.clear()

    a.raw("; ================= P2: attention =================")
    Q = [8, 16]
    S = [24, 40]
    O = [56, 72]
    P = 88
    KR, VR = 96, 104
    a(f"ds_read_b128 {vr(Q[0],4)}, v{V_QR1}")
    a(f"ds_read_b128 {vr(Q[0]+4,4)}, v{V_QR1} offset:1024")
    a(f"ds_read_b128 {vr(Q[1],4)}, v{V_QR0}")
    a(f"ds_read_b128 {vr(Q[1]+4,4)}, v{V_QR0} offset:1024")
    a.label("L_PRIME")
    a(f"v_add_u32 v{V_CUR}, {L_RING[0]}, v{V_KP}")
    a(f"v_add_u32 v{V_NXT}, {L_RING[1]}, v{V_KP}")
    a(f"ds_read_b128 {vr(KR,4)}, v{V_CUR}")
    a(f"ds_read_b128 {vr(KR+4,4)}, v{V_CUR} offset:1024")
    a(f"ds_read_b128 {vr(VR,4)}, v{V_CUR} offset:2048")
    a(f"s_mov_b32 s{S_ST}, 0")
    a(f"s_mov_b32 s{S_CUR}, {L_RING[0]}")
    a(f"s_mov_b32 s{S_NXT}, {L_RING[1]}")
    a(f"s_mov_b32 s{S_PRV}, {L_RING[2]}")
    for r in range(16):
        a(f"v_mov_b32 v{O[0]+r}, 0")
    for r in range(4):
        a(f"v_mov_b32 v{P+4+r}, 0")
        a(f"v_mov_b32 v{VR+4+r}, 0")
    a("s_waitcnt lgkmcnt(0)")
    a(f"v_mfma_f32_32x32x16_bf16 {vr(S[0],16)}, {vr(KR,4)}, {vr(Q[0],4)}, 0")
    a(f"v_mfma_f32_32x32x16_bf16 {vr(S[0],16)}, {vr(KR+4,4)}, {vr(Q[0]+4,4)}, {vr(S[0],16)}")
    for r in range(16):
        a(f"v_mov_b32 v{O[1]+r}, 0")
    a(f"s_cmp_lg_u32 s{S_FB}, 0")
    a("s_cbranch_scc1 L_LOOP")
    a("s_barrier")
    a(f"buffer_load_dwordx2 {vr(V_POLL,2)}, v{V_FP}, s[{SWS}:{SWS+3}], 0 offen sc1")
    stamp(a, 5)
    qstamp(a, 5)
    S_D1 = 49
    a(f"s_mov_b32 s{S_D1}, 0")
    a("s_movk_i32 s50, 0xfe")

    S_REM = 50
    PR = [V_POLL, 126, 122]
    def poll_issue(r):
        a(f"buffer_load_dwordx2 {vr(r,2)}, v{V_FP}, s[{SWS}:{SWS+3}], 0 offen sc1")
    def poll_eval(r, n=0):
        a(f"s_waitcnt vmcnt({n})")
        a(f"v_cmp_eq_u64 vcc, s[{S_TAG}:{S_TAG+1}], {vr(r,2)}")
        a("s_nop 3")
        a(f"s_and_b32 s{S_RDY}, vcc_lo, 0xff")
    def avail():
        if "adapt" in OPT:
            a(f"s_and_b32 s{S_C}, s{S_RDY}, s{S_REM}")
        else:
            a(f"s_sub_u32 s{S_C}, 0, s{S_REM}")
            a(f"s_and_b32 s{S_C}, s{S_C}, s{S_REM}")
            a(f"s_and_b32 s{S_C}, s{S_C}, s{S_RDY}")
    def poll_until(label):
        a(f"s_mov_b32 s{S_SPIN}, {SPIN_MAX}")
        a.label(label)
        avail()
        a(f"s_cbranch_scc1 {label}_OK")
        poll_issue(V_POLL)
        a(f"s_sub_u32 s{S_SPIN}, s{S_SPIN}, 1")
        poll_eval(V_POLL)
        a(f"s_cmp_lg_u32 s{S_SPIN}, 0")
        a(f"s_cbranch_scc1 {label}")
        a(f"s_mov_b32 s{S_C}, s{S_REM}")
        a.label(label + "_OK")

    def kv_dma(slot_sgpr):
        a(f"s_ff1_i32_b32 s{S_C}, s{S_C}")
        a(f"s_bitset0_b32 s{S_REM}, s{S_C}")
        a(f"s_add_u32 s{S_A}, s{S_QB}, s{S_C}")
        a(f"s_and_b32 s{S_A}, s{S_A}, 7")
        a(f"s_add_u32 m0, s{slot_sgpr}, s{S_W4K}")
        a(f"s_lshl_b32 s{S_A}, s{S_A}, 15")
        for i in range(4):
            a(f"buffer_load_dwordx4 v{V_DM}, s[{SKV}:{SKV+3}], s{S_A} offen offset:{i*1024} sc1 lds")

    def wo_dma():
        a(f"s_mov_b32 m0, s{S_WOM}")
        for q in range(4):
            a(f"s_sub_u32 s{S_T}, s{S_WOG}, {q*192}")
            if "nowd" not in OPT:
                a(f"buffer_load_dwordx4 v{V_WOD}, s[{SWO}:{SWO+3}], s{S_T} offen offset:{q*1088} lds")
        a(f"s_add_u32 s{S_WOG}, s{S_WOG}, s{S_WOX}")
        a(f"s_xor_b32 s{S_WOX}, s{S_WOX}, {(16*896) ^ (12*896)}")

    def wo_read(c):
        for f in range(4 if "nowr" not in OPT else 0):
            d = (c * 4 + f) * 4
            a(f"ds_read_b64_tr_b16 {ar(d,2)}, v{V_WOR} offset:{f*64}")
            a(f"ds_read_b64_tr_b16 {ar(d+2,2)}, v{V_WOR} offset:{f*64 + 512}")

    def wo_read_half(c, hf):
        for f in range(2 * hf, 2 * hf + 2):
            d = (c * 4 + f) * 4
            a(f"ds_read_b64_tr_b16 {ar(d,2)}, v{V_WOR} offset:{f*64}")
            a(f"ds_read_b64_tr_b16 {ar(d+2,2)}, v{V_WOR} offset:{f*64 + 512}")
    def wo_piece(st, q):
        row0 = (st >> 1) * 28 + (st & 1) * 16
        a(f"s_mov_b32 m0, s{S_WOM}")
        a(f"s_add_u32 s{S_T}, s{S_WOG}, {row0*896 - q*192}")
        a(f"buffer_load_dwordx4 v{V_WOD}, s[{SWO}:{SWO+3}], s{S_T} offen offset:{q*1088} lds")
    S_KVS = 51
    def send_partial():
        a(f"s_xor_b32 s{S_A}, s{S_W4K}, {4*4096}")
        a(f"s_add_u32 s{S_A}, s{S_A}, {L_RED}")
        a(f"v_add_u32 v4, s{S_A}, v{V_L16}")
        for q in range(4):
            a(f"ds_write_b128 v4, {vr(O[0]+4*q,4)} offset:{q*1024}")
    def kv_piece(st, i):
        a(f"s_add_u32 m0, s{S_W4K}, {L_RING[(st + 2) % 3]}")
        a("s_nop 0")
        a(f"buffer_load_dwordx4 v{V_DM}, s[{SKV}:{SKV+3}], s{S_KVS} offen offset:{i*1024} sc1 lds")
    def stage(first, st=None):
        sfx = "F" if first else ("L" if st is None else f"S{st}")
        for u in range(8):
            n, T = u >> 1, u & 1
            Sc, Sn = S[T], S[1 - T]
            def E(i):
                a(f"v_exp_f32 v{Sc+i}, v{Sc+i}")
            def C(i):
                a(f"v_cvt_pk_bf16_f32 v{P+i}, v{Sc+2*i}, v{Sc+2*i+1}")
            def addr(nn):
                if st is None:
                    return (V_CUR, nn * 8192) if nn < 4 else (V_NXT, 0)
                slot = L_RING[(st + (nn >> 2)) % 3]
                return (V_CUR, (nn & 3) * 8192) if slot == L_RING[0] else (V_KP, slot + (nn & 3) * 8192)
            if u == 6:
                if first: qstamp(a, 7)
                a("s_waitcnt vmcnt(0) lgkmcnt(0)")
                if first: qstamp(a, 8)
                a("s_barrier")
                if first: qstamp(a, 9)
            elif T == 1:
                a("s_waitcnt lgkmcnt(0)" if "w1" in OPT else "s_waitcnt lgkmcnt(1)" if "w2" in OPT else "s_waitcnt lgkmcnt(2)")
            if u == 6 and st is not None:
                wo_read_half(st, 0)
            if T == 0 and "noprio" not in OPT:
                if "prio2" in OPT:
                    if u in (6, 2): a(f"s_setprio {1 if u == 6 else 0}")
                elif "prio3" in OPT:
                    a(f"s_setprio {[2,1,0,3][u//2] if u != 4 else 0}")
                else:
                    a(f"s_setprio {3 - ((u + 2) % 8) // 2}")
            last = (st == 7 and u == 7)
            if not last:
                a(f"v_mfma_f32_32x32x16_bf16 {vr(Sn,16)}, {vr(KR,4)}, {vr(Q[1-T],4)}, 0")
            if T == 0:
                va, off = addr(n + 1)
                a(f"ds_read_b128 {vr(KR,4)}, v{va} offset:{off}")
            E(0); E(1); E(2); E(3)
            if T == 1 and "w1" not in OPT and "w2" not in OPT:
                a("s_waitcnt lgkmcnt(1)")
            a(f"v_mfma_f32_32x32x16_bf16 {vr(O[1-T],16)}, {vr(VR+4,4)}, {vr(P+4,4)}, {vr(O[1-T],16)}")
            if T == 0:
                va, off = addr(n)
                a(f"ds_read_b128 {vr(VR+4,4)}, v{va} offset:{off+3072}")
            C(0); C(1)
            if u in (6, 7) and st is not None and st < 6:
                if u == 6:
                    a(f"s_bitcmp1_b32 s{S_RDY}, {st + 2}")
                    a(f"s_cbranch_scc0 L_SLOW{st}")
                    a.label(f"L_FAST{st}")
                    a(f"s_add_u32 s{S_KVS}, s{S_QB}, {st + 2}")
                    a(f"s_and_b32 s{S_KVS}, s{S_KVS}, 7")
                    a(f"s_lshl_b32 s{S_KVS}, s{S_KVS}, 15")
                kv_piece(st, 2 * (u - 6))
            E(4); E(5); E(6)
            if T == 1 and "w1" not in OPT:
                a("s_waitcnt lgkmcnt(0)")
            if not last:
                a(f"v_mfma_f32_32x32x16_bf16 {vr(Sn,16)}, {vr(KR+4,4)}, {vr(Q[1-T]+4,4)}, {vr(Sn,16)}")
            if T == 0:
                va, off = addr(n + 1)
                a(f"ds_read_b128 {vr(KR+4,4)}, v{va} offset:{off+1024}")
            E(7); C(2); C(3)
            if u == 7 and st is not None:
                wo_read_half(st, 1)
            if st and u in (1, 2):
                wo_piece(st, 2 * u - 1)
            E(8); E(9); E(10)
            if T == 0:
                a("s_waitcnt lgkmcnt(3)")
            a(f"v_mfma_f32_32x32x16_bf16 {vr(O[T],16)}, {vr(VR,4)}, {vr(P,4)}, {vr(O[T],16)}")
            if T == 1 and not last:
                va, off = addr(n + 1)
                a(f"ds_read_b128 {vr(VR,4)}, v{va} offset:{off+2048}")
            if last:
                send_partial()
            E(11); C(4); C(5)
            if first and u == 0:
                poll_issue(PR[1])
                for q in range(4): wo_piece(0, q)
            if first and 1 <= u <= 5:
                a(f"s_cmp_lg_u32 s{S_D1}, 0")
                a(f"s_cbranch_scc1 L_CK{u}")
                poll_eval(PR[(u - 1) % 3], 5 if (u <= 2 and "nop3" not in OPT) else 1)
                if u == 5:
                    poll_until("L_P1")
                else:
                    avail()
                    a(f"s_cbranch_scc1 L_GO{u}")
                    poll_issue(PR[(u + 1) % 3])
                    a(f"s_branch L_CK{u}")
                    a.label(f"L_GO{u}")
                qstamp(a, 6)
                kv_dma(S_NXT)
                a(f"s_mov_b32 s{S_D1}, 1")
                a.label(f"L_CK{u}")
            if st and u in (0, 1):
                wo_piece(st, 2 * u)
            if u in (6, 7) and st is None:
                a(f"s_cmp_lg_u32 s{S_KPS}, {u - 6}")
                a(f"s_cbranch_scc1 L_NODMA{u}{sfx}")
                a(f"s_cmp_eq_u32 s{S_REM}, 0")
                a(f"s_cbranch_scc1 L_NODMA{u}{sfx}")
                poll_until(f"L_P2{u}{sfx}")
                kv_dma(S_PRV)
                a.label(f"L_NODMA{u}{sfx}")
            if u in (6, 7) and st is not None and st < 6:
                kv_piece(st, 2 * (u - 6) + 1)
            if u == 7 and st is None:
                a(f"s_mov_b32 s{S_T}, s{S_CUR}")
                a(f"s_mov_b32 s{S_CUR}, s{S_NXT}")
                a(f"s_mov_b32 s{S_NXT}, s{S_PRV}")
                a(f"s_mov_b32 s{S_PRV}, s{S_T}")
                a(f"v_add_u32 v{V_CUR}, s{S_CUR}, v{V_KP}")
                a(f"v_add_u32 v{V_NXT}, s{S_NXT}, v{V_KP}")
                a(f"s_add_u32 s{S_ST}, s{S_ST}, 1")
                a(f"s_cmp_lt_u32 s{S_ST}, 8")
            E(12); E(13); E(14); E(15); C(6); C(7)

    if "solo" in OPT:
        a(f"s_cmp_ge_u32 s{S_W}, 4")
        a("s_cbranch_scc1 L_END")
    stage(True, 0)
    stamp(a, 6)
    qstamp(a, 10)
    dbgt(a, 3)
    for st in range(1, 8):
        stage(False, st)
    a("s_nop 0")
    a.label("L_POST")
    stamp(a, 7)
    rstamp(a, 2)
    if "solo" in OPT:
        stamp_flush(a, 8, S_W)
        a("s_endpgm")
    dbgt(a, 4)
    GX, GW = S[1], KR
    a(f"s_lshr_b32 s{S_C}, s{S_HH}, 2")
    a(f"v_mfma_f32_32x32x16_bf16 {vr(O[1],16)}, {vr(VR+4,4)}, {vr(P+4,4)}, {vr(O[1],16)}")
    a(f"s_lshl_b32 s{S_A}, s{S_QB}, 3")
    a(f"s_add_u32 s{S_C}, s{S_C}, s{S_A}")
    a(f"s_lshl_b32 s{S_A}, s{S_C}, 3")
    a(f"s_add_u32 s{S_A}, s{S_A}, s{S_W}")
    a(f"s_mul_i32 s{S_A}, s{S_A}, {4*896}")
    a(f"v_lshrrev_b32 v6, 4, v{V_LANE}")
    a("v_mul_u32_u24 v6, 896, v6")
    a(f"v_and_b32 v7, 15, v{V_LANE}")
    a("v_lshlrev_b32 v7, 4, v7")
    a("v_add_u32 v6, v6, v7")
    a("s_waitcnt lgkmcnt(0)")
    for q in range(4):
        a(f"buffer_load_dwordx4 {vr(GX+4*q,4)}, v6, s[{SX}:{SX+3}], s{S_A} offen offset:{q*256}")
    for q in range(4):
        a(f"buffer_load_dwordx4 {vr(GW+4*q,4)}, v7, s[{SG}:{SG+3}], 0 offen offset:{q*256}")
    a(f"v_add_u32 v5, s{S_XA}, v{V_L16}")
    a(f"v_mov_b32 v6, {f32hex(2.0**39)}")
    a(f"v_max_f32 v7, v{O[0]+12}, v{O[1]+12}")
    a(f"v_add_f32 v4, v{O[0]+12}, v{O[1]+12}")
    a("v_cmp_nlt_f32 vcc, v7, v6")
    a(f"v_cmp_u_f32 s[{S_A}:{S_A+1}], v4, v4")
    a(f"v_mov_b32 v6, {L_FB}")
    a("v_mov_b32 v7, 1")
    a("s_nop 1")
    a(f"s_or_b32 s{S_A}, vcc_hi, s{S_A+1}")
    a("s_cbranch_scc0 L_NOVOTE")
    a("ds_write_b32 v6, v7")
    a.label("L_NOVOTE")
    a("s_waitcnt lgkmcnt(0)")
    a("s_barrier")
    rstamp(a, 3)
    a("ds_read_b32 v7, v6")
    for q in range(4):
        a(f"ds_read_b128 {vr(S[0]+4*q,4)}, v5 offset:{q*1024}")
    a(f"s_cmp_lg_u32 s{S_FB}, 0")
    a("s_cbranch_scc1 L_FIN")
    a("s_waitcnt lgkmcnt(4)")
    a(f"v_readfirstlane_b32 s{S_A}, v7")
    a("s_nop 3")
    a(f"s_cmp_lg_u32 s{S_A}, 0")
    a("s_cbranch_scc1 L_FALLBACK")
    a.label("L_FIN")
    a("s_waitcnt lgkmcnt(0)")
    for r in range(16):
        a(f"v_add_f32 v{O[1]+r}, v{O[1]+r}, v{S[0]+r}")
    a(f"v_mov_b32 v4, v{O[1]+12}")
    a(f"v_mov_b32 v5, v{O[1]+12}")
    a(f"s_lshl_b32 s{S_A}, s{S_QB}, 3")
    a(f"s_add_u32 s{S_A}, s{S_A}, s{S_T0}")
    a("v_permlane32_swap_b32 v4, v5")
    a(f"s_lshl_b32 s{S_A}, s{S_A}, 5")
    a(f"s_add_u32 s{S_A}, s{S_A}, s{S_HH}")
    a("v_rcp_f32 v4, v5")
    a(f"s_lshl_b32 s{S_B}, s{S_A}, 11")
    a(f"s_add_u32 s{S_B}, s{S_B}, {OF_BASE}")
    for r in range(8):
        a(f"v_mul_f32 v{O[1]+r}, v{O[1]+r}, v4")
    for m in range(4):
        a(f"v_cvt_pk_bf16_f32 v{P+m}, v{O[1]+2*m}, v{O[1]+2*m+1}")
    a(f"buffer_store_dwordx4 {vr(P,4)}, v{V_L16}, s[{SWS}:{SWS+3}], s{S_B} offen sc1")
    for r in range(8, 16):
        a(f"v_mul_f32 v{O[1]+r}, v{O[1]+r}, v4")
    for m in range(4, 8):
        a(f"v_cvt_pk_bf16_f32 v{P+m}, v{O[1]+2*m}, v{O[1]+2*m+1}")
    a("s_mov_b32 exec_lo, 0")
    a(f"v_mov_b32 v{P+6}, 0")
    a(f"v_mov_b32 v{P+7}, 0")
    a("s_mov_b32 exec_lo, -1")
    a(f"buffer_store_dwordx4 {vr(P+4,4)}, v{V_L16}, s[{SWS}:{SWS+3}], s{S_B} offen offset:1024 sc1")
    stamp(a, 8)
    rstamp(a, 4)
    if "nop3" not in OPT:
        a.raw("; ================= P3: output projection =================")
        a(f"s_lshl_b32 s{S_B}, s{S_A}, 3")
        a(f"s_add_u32 s{S_B}, s{S_B}, {F3_BASE}")
        a(f"s_lshl_b32 s{S_A}, s{S_C}, 5")
        a(f"s_lshl_b32 s{S_T}, s{S_W}, 2")
        a(f"s_add_u32 s{S_A}, s{S_A}, s{S_T}")
        a(f"s_lshl_b32 s{S_T}, s{S_A}, 3")
        a(f"s_add_u32 s{S_T}, s{S_T}, {F3_BASE}")
        a(f"v_and_b32 v7, 3, v{V_LANE}")
        a(f"v_lshl_add_u32 v{V_FP}, v7, 3, s{S_T}")
        a(f"s_lshl_b32 s{S_A}, s{S_A}, 11")
        a(f"s_add_u32 s{S_A}, s{S_A}, {OF_BASE}")
        a("v_mov_b32 v4, 0")
        a("v_mov_b32 v5, 0")
        a("s_waitcnt vmcnt(2)")
        for d in range(0, 16, 2):
            a(f"v_dot2c_f32_bf16 v4, v{GX+d}, v{GW+d}")
            a(f"v_dot2c_f32_bf16 v5, v{GX+d+1}, v{GW+d+1}")
        a(f"v_lshrrev_b32 v6, 4, v{V_LANE}")
        a("v_lshlrev_b32 v6, 2, v6")
        a(f"s_lshl_b32 s{S_T}, s{S_W}, 4")
        a(f"s_add_u32 s{S_T}, s{S_T}, {L_GV}")
        a("v_add_f32 v4, v4, v5")
        a(f"v_add_u32 v6, s{S_T}, v6")
        for sh in (8, 4, 2, 1):
            a("s_nop 1")
            a(f"v_add_f32_dpp v4, v4, v4 row_ror:{sh} row_mask:0xf bank_mask:0xf")
        a(f"v_mul_f32 v4, {f32hex(-math.log2(math.e))}, v4")
        a("v_exp_f32 v4, v4")
        a("v_mov_b32 v7, 0")
        a("v_add_f32 v4, 1.0, v4")
        a("v_rcp_f32 v4, v4")
        a("s_nop 0")
        a("ds_write_b32 v6, v4")
        rstamp(a, 5)
        a("s_waitcnt vmcnt(0)")
        rstamp(a, 6)
        a("s_mov_b64 exec, 1")
        a(f"buffer_store_dwordx2 {vr(V_TAGV,2)}, v7, s[{SWS}:{SWS+3}], s{S_B} offen sc1")
        a("s_mov_b64 exec, -1")
        a("s_waitcnt lgkmcnt(0)")
        a("s_barrier")
        ACC = 8
        OFR = 72
        a(f"v_and_b32 v5, 31, v{V_LANE}")
        a("v_lshlrev_b32 v104, 2, v5")
        a(f"v_add_u32 v104, {L_GV}, v104")
        a("ds_read_b32 v105, v104")
        a(f"s_lshl_b32 s{S_T}, s{S_C}, 5")
        a(f"v_add_u32 v5, s{S_T}, v5")
        a("v_mul_u32_u24 v5, 896, v5")
        a(f"v_lshrrev_b32 v6, 5, v{V_LANE}")
        a("v_lshl_add_u32 v107, v6, 4, v5")
        a(f"s_lshl_b32 s{S_B}, s{S_FT0}, 6")
        a(f"s_lshl_b32 s{S_T}, s{S_W}, 5")
        a(f"s_add_u32 s{S_B}, s{S_B}, s{S_T}")
        a(f"s_and_b32 s{S_C}, s{S_HH}, 2")
        a(f"s_lshr_b32 s{S_T}, s{S_W}, 1")
        a(f"s_add_u32 s{S_C}, s{S_C}, s{S_T}")
        a(f"s_cmp_eq_u32 s{S_C}, 5")
        a(f"s_cselect_b32 s{S_C}, {OOB}, s{S_B}")
        a(f"s_lshl_b32 s{S_T}, s{S_W}, 11")
        a(f"v_add_u32 v108, s{S_T}, v{V_L16}")
        a(f"v_add_u32 v109, 0x10000, v108")
        a(f"s_lshl_b32 s{S_T}, s{S_W}, 14")
        a(f"v_add_u32 v110, s{S_T}, v{V_L16}")
        a(f"s_mov_b32 s{S_SPIN}, {SPIN_MAX}")
        a.label("L_P3")
        a(f"buffer_load_dwordx2 {vr(V_POLL,2)}, v{V_FP}, s[{SWS}:{SWS+3}], 0 offen sc1")
        a(f"s_sub_u32 s{S_SPIN}, s{S_SPIN}, 1")
        a(f"s_cmp_eq_u32 s{S_SPIN}, 0")
        a("s_cbranch_scc1 L_P3_OK")
        a("s_waitcnt vmcnt(0)")
        a(f"v_cmp_eq_u64 vcc, s[{S_TAG}:{S_TAG+1}], {vr(V_POLL,2)}")
        a("s_nop 3")
        a("s_cmp_eq_u64 vcc, -1")
        a("s_cbranch_scc0 L_P3")
        a.label("L_P3_OK")
        stamp(a, 9)
        rstamp(a, 7)
        a(f"s_add_u32 s{S_B}, s{S_A}, 4096")
        for i in range(8):
            a(f"buffer_load_dwordx4 {vr(OFR+4*i,4)}, v{V_L16}, s[{SWS}:{SWS+3}], s{S_A if i < 4 else S_B} offen offset:{(i&3)*1024} sc1")
        for i in range(8):
            a(f"s_waitcnt vmcnt({7-i})")
            for f in range(4):
                c = "0" if i == 0 else vr(ACC + 16*f, 16)
                a(f"v_mfma_f32_32x32x16_bf16 {vr(ACC+16*f,16)}, {ar((i*4+f)*4,4)}, {vr(OFR+4*i,4)}, {c}")
        stamp(a, 10)
        rstamp(a, 8)
        a("s_waitcnt lgkmcnt(0)")
        a("v_sub_f32 v106, 1.0, v105")
        a("s_nop 7")
        for d in range(8):
            va = 108 if d < 4 else 109
            for q in range(2):
                a(f"ds_write_b128 v{va}, {vr(ACC + 8*d + 4*q, 4)} offset:{L_R3 + (d&3)*16384 + q*1024}")
        a("s_waitcnt lgkmcnt(0)")
        rstamp(a, 9)
        a("s_barrier")
        rstamp(a, 10)
        for src in range(8):
            for q in range(2):
                a(f"ds_read_b128 {vr(ACC + 8*src + 4*q, 4)}, v110 offset:{L_R3 + src*2048 + q*1024}")
        for br in range(2):
            b0 = ACC + 32 * br
            a(f"s_waitcnt lgkmcnt({12 - 8*br})")
            for r in range(8):
                a(f"v_add_f32 v{b0+r}, v{b0+r}, v{b0+8+r}")
            a(f"s_waitcnt lgkmcnt({8 - 8*br})")
            for r in range(8):
                a(f"v_add_f32 v{b0+16+r}, v{b0+16+r}, v{b0+24+r}")
            for r in range(8):
                a(f"v_add_f32 v{b0+r}, v{b0+r}, v{b0+16+r}")
        for r in range(8):
            a(f"v_mul_f32 v{ACC+r}, v{ACC+r}, v105")
        for r in range(8):
            a(f"v_fmac_f32 v{ACC+r}, v{ACC+32+r}, v106")
        for m in range(4):
            a(f"v_cvt_pk_bf16_f32 v{OFR+m}, v{ACC+2*m}, v{ACC+2*m+1}")
        a("s_nop 1")
        a(f"v_permlane32_swap_b32 v{OFR}, v{OFR+2}")
        a(f"v_permlane32_swap_b32 v{OFR+1}, v{OFR+3}")
        a(f"buffer_store_dwordx4 {vr(OFR,4)}, v107, s[{SOUT}:{SOUT+3}], s{S_C} offen")
    dbgt_flush(a, S_W)
    stamp_flush(a, 11 if "nop3" not in OPT else 9, S_W)
    a.label("L_END")
    a("s_endpgm")

    a.label("L_TAGSLOW")
    a(f"s_cmp_eq_u32 s{S_SPIN}, 0")
    a("s_cbranch_scc1 L_TAG_OK")
    a(f"buffer_load_dwordx2 {vr(V_TAGV,2)}, v9, s[{SDBG}:{SDBG+3}], 0 offen sc1")
    a("s_branch L_TAG")
    for st in range(6):
        a.label(f"L_SLOW{st}")
        a(f"s_mov_b32 s{S_SPIN}, {SPIN_MAX}")
        a.label(f"L_SLOWL{st}")
        poll_issue(V_POLL)
        a(f"s_sub_u32 s{S_SPIN}, s{S_SPIN}, 1")
        poll_eval(V_POLL)
        a(f"s_bitcmp1_b32 s{S_RDY}, {st + 2}")
        a(f"s_cbranch_scc1 L_FAST{st}")
        a(f"s_cmp_lg_u32 s{S_SPIN}, 0")
        a(f"s_cbranch_scc1 L_SLOWL{st}")
        a(f"s_branch L_FAST{st}")
    a.label("L_LOOP")
    stage(False)
    a("s_cbranch_scc1 L_LOOP")
    send_partial()
    a("s_branch L_POST")

    a.label("L_FALLBACK")
    a(f"s_mov_b32 s{S_FB}, 64")
    a("s_mov_b32 exec_lo, 0")
    for t in range(2):
        a(f"v_mov_b32 v{Q[t]+6}, 0")
        a(f"v_mov_b32 v{Q[t]+7}, 0")
    a("s_mov_b32 exec_lo, -1")
    a("v_mov_b32 v4, 0xff800000")
    a("v_mov_b32 v5, 0xff800000")
    a(f"s_mov_b32 s{S_A}, 0")
    a("s_waitcnt vmcnt(0) lgkmcnt(0)")
    a("s_barrier")
    a.label("L_FBMAX")
    a(f"buffer_load_dwordx4 {vr(KR,4)}, v{V_L16}, s[{SKV}:{SKV+3}], s{S_A} offen sc1")
    a(f"buffer_load_dwordx4 {vr(KR+4,4)}, v{V_L16}, s[{SKV}:{SKV+3}], s{S_A} offen offset:1024 sc1")
    a("s_waitcnt vmcnt(0)")
    for t in range(2):
        a(f"v_mfma_f32_32x32x16_bf16 {vr(S[t],16)}, {vr(KR,4)}, {vr(Q[t],4)}, 0")
        a(f"v_mfma_f32_32x32x16_bf16 {vr(S[t],16)}, {vr(KR+4,4)}, {vr(Q[t]+4,4)}, {vr(S[t],16)}")
    a("s_nop 15")
    for t in range(2):
        for r in range(0, 16, 2):
            a(f"v_max3_f32 v{4+t}, v{4+t}, v{S[t]+r}, v{S[t]+r+1}")
    a(f"s_add_u32 s{S_A}, s{S_A}, 4096")
    a(f"s_cmp_lt_u32 s{S_A}, 262144")
    a("s_cbranch_scc1 L_FBMAX")
    a(f"s_mov_b32 s{S_CUR}, {L_RING[0]}")
    a(f"s_mov_b32 s{S_NXT}, {L_RING[1]}")
    a(f"s_movk_i32 s{S_REM}, 0xff")
    a(f"s_movk_i32 s{S_RDY}, 0xff")
    a(f"s_mov_b32 s{S_C}, 1")
    kv_dma(S_CUR)
    a(f"s_mov_b32 s{S_C}, 2")
    kv_dma(S_NXT)
    a("v_mov_b32 v6, v4")
    a("v_mov_b32 v7, v5")
    a("s_nop 1")
    a("v_permlane32_swap_b32 v4, v6")
    a("v_permlane32_swap_b32 v5, v7")
    a("s_nop 0")
    a("v_max_f32 v4, v4, v6")
    a("v_max_f32 v5, v5, v7")
    split_m(4, Q[0] + 6)
    split_m(5, Q[1] + 6)
    a("s_waitcnt vmcnt(4)")
    a("s_barrier")
    a("s_branch L_PRIME")
    a.label("L_CODE_END")

    nsg = 102 if STAMP or "dbgt" in OPT else 78
    return a.text() + f"""
.section .rodata,"a"
.p2align 6
.amdhsa_kernel {KNAME}
  .amdhsa_next_free_vgpr 256
  .amdhsa_next_free_sgpr {nsg}
  .amdhsa_accum_offset 128
  .amdhsa_group_segment_fixed_size 0
  .amdhsa_kernarg_size 80
  .amdhsa_user_sgpr_count 2
  .amdhsa_user_sgpr_kernarg_segment_ptr 1
  .amdhsa_system_sgpr_workgroup_id_x 1
.end_amdhsa_kernel
"""

def main():
    global STAMP
    if len(sys.argv) > 2 and sys.argv[2] == "stamp": STAMP = True
    OPT.update(sys.argv[3:])
    OPT.update(["w1", "prio2"])
    hdr = open("cdna_kernels/" + NAME + ".s.ref").read().split("\n")
    top = [l for l in hdr if l.startswith(";") and "@launch" not in l and "Override" not in l and "grid=ceil" not in l]
    out = "\n".join(top[:11]) + "\n"
    out += f"; @launch grid=(256,1,1) block=(512,1,1) lds={LDS_BYTES}\n"
    out += """;
"""
    out += '.amdgcn_target "amdgcn-amd-amdhsa--gfx950"\n'
    out += gen()
    path = sys.argv[1] if len(sys.argv) > 1 else "cdna_kernels/" + NAME + ".s"
    open(path, "w").write(out)

if __name__ == "__main__":
    main()
```

```python
import struct, sys, math

NAME = "gated_mix__softmax_full_mha__softmax_full_mha__prompt"
KNAME = NAME + "_kernel"

def f32hex(x):
    return "0x%08x" % struct.unpack("<I", struct.pack("<f", x))[0]

class Asm:
    def __init__(self):
        self.lines = []
    def __call__(self, s):
        for ln in s.strip("\n").split("\n"):
            self.lines.append("    " + ln.strip())
    def label(self, l):
        self.lines.append(l + ":")
    def raw(self, s):
        self.lines.append(s)
    def text(self):
        return "\n".join(self.lines) + "\n"

class Cnt:
    def __init__(self):
        self.q = []
    def issue(self, tag, n=1):
        for _ in range(n):
            self.q.append(tag)
    def need(self, *tags):
        idx = -1
        for i, t in enumerate(self.q):
            if t in tags:
                idx = i
        if idx < 0:
            return None
        n = len(self.q) - 1 - idx
        self.q = self.q[idx + 1:]
        return n
    def clear(self):
        self.q = []

def vr(lo, n):
    return f"v[{lo}:{lo+n-1}]"
def ar(lo, n):
    return f"a[{lo}:{lo+n-1}]"

KV_BASE = 0
OF_BASE = 8 << 20
F2_BASE = 12 << 20
F3_BASE = (12 << 20) + (64 << 10)
WS_SIZE = 13 << 20
X_BYTES = 2048 * 448 * 2
W_BYTES = 448 * 1344 * 2
WO_BYTES = 448 * 448 * 2
OUT_BYTES = 2048 * 448 * 2
OOB = 0x40000000
QSCALE = math.log2(math.e) / math.sqrt(28.0)
SPIN_MAX = 200000

L_W = 0
L_XB = 86016
L_XA = 126976
L_RING = [L_XA, 0, 32768]
L_WO = 65536
L_R3 = 0
L_RED = L_XA
L_FB = L_XA + 32768
L_GV = L_FB + 64
L_TAG = L_GV + 128
LDS_BYTES = L_TAG + 64

STAMP = False
OPT = set()
STAMP_BASE = 64 << 20
STR = [78 + 2*i for i in range(12)] + [36, 38]
def dbgt(a, slot):
    if "dbgt" not in OPT: return
    a(f"s_memrealtime s[{80+2*slot}:{81+2*slot}]")
def dbgt_flush(a, s_w):
    if "dbgt" not in OPT: return
    a("s_waitcnt vmcnt(0)")
    dbgt(a, 5)
    a("s_waitcnt lgkmcnt(0)")
    a("s_lshl_b32 s78, s2, 3")
    a(f"s_add_u32 s78, s78, s{s_w}")
    a("s_mov_b32 s79, 0x40000000")
    a("s_cmp_eq_u32 s78, 40")
    a("s_cselect_b32 s79, 16, s79")
    a("s_cmp_eq_u32 s78, 1607")
    a("s_cselect_b32 s79, 40, s79")
    a("v_mov_b32 v1, 0")
    a("s_mov_b64 exec, 1")
    for i in range(6):
        a(f"v_mov_b32 v2, s{80+2*i}")
        a(f"buffer_store_dword v2, v1, s[32:35], s79 offen offset:{4*i}")
def qstamp(a, i):
    if STAMP and "qst" in OPT:
        a(f"s_memtime s[{STR[i]}:{STR[i]+1}]")
def rstamp(a, i):
    if STAMP and "rst" in OPT:
        a(f"s_memtime s[{STR[i]}:{STR[i]+1}]")
def pstamp(a, i):
    if STAMP and "pst" in OPT:
        a(f"s_memtime s[{STR[i]}:{STR[i]+1}]")
def stamp(a, i, real=False):
    if not STAMP: return
    if ("pst" in OPT or "qst" in OPT or "rst" in OPT) and i >= 2: return
    a(f"{'s_memrealtime' if real else 's_memtime'} s[{STR[i]}:{STR[i]+1}]")
def stamp_flush(a, n, s_w):
    if not STAMP: return
    a("s_waitcnt vmcnt(0) lgkmcnt(0)")
    a(f"s_memtime s[{STR[n]}:{STR[n]+1}]")
    a(f"s_memrealtime s[{STR[n+1]}:{STR[n+1]+1}]")
    a("s_waitcnt lgkmcnt(0)")
    a("s_mov_b32 s14, 0x10000000")
    a("s_lshl_b32 s59, s2, 3")
    a(f"s_add_u32 s59, s59, s{s_w}")
    a("s_lshl_b32 s59, s59, 7")
    a(f"s_add_u32 s59, s59, {STAMP_BASE}")
    a("v_mov_b32 v1, 0")
    a("s_mov_b64 exec, 1")
    a("s_getreg_b32 s60, hwreg(HW_REG_XCC_ID)")
    a("v_mov_b32 v2, s60")
    a("v_mov_b32 v3, 0")
    a("buffer_store_dwordx2 v[2:3], v1, s[12:15], s59 offen offset:120")
    for i in range(n + 2):
        a(f"v_mov_b32 v2, s{STR[i]}")
        a(f"v_mov_b32 v3, s{STR[i]+1}")
        a(f"buffer_store_dwordx2 v[2:3], v1, s[12:15], s59 offen offset:{8*i}")
        a("s_nop 1")

def srd(a, d, lo, hi, nbytes):
    a(f"s_mov_b32 s{d}, s{lo}")
    a(f"s_mov_b32 s{d+1}, s{hi}")
    a(f"s_mov_b32 s{d+2}, {nbytes}")
    a(f"s_mov_b32 s{d+3}, 0x00020000")

def gen():
    a = Asm()
    a.raw(".text")
    a.raw(f".globl {KNAME}")
    a.raw(".p2align 8")
    a.raw(f".type {KNAME},@function")
    a.label(KNAME)
    SX, SW, SWS, SWO, SG, SKV, SOUT, SDBG = 4, 8, 12, 16, 20, 24, 28, 32
    S_HH, S_QB, S_W, S_T, S_TT, S_R = 56, 57, 58, 59, 60, 61
    S_A, S_B, S_C = 62, 63, 64
    S_XA, S_XB = 65, 66
    S_TAG = 68
    S_RDY = 70
    S_ST, S_CUR, S_NXT, S_PRV = 71, 72, 73, 74
    S_SPIN = 75
    S_W4K = 76
    S_FB = 77
    V_LANE, V_L16 = 2, 3
    a("s_cmp_ge_u32 s2, 256")
    a("s_cbranch_scc1 L_END")
    stamp(a, 0); stamp(a, 1, True); dbgt(a, 0)
    a("s_load_dwordx16 s[36:51], s[0:1], 0")
    a("s_load_dwordx4 s[52:55], s[0:1], 64")
    a(f"s_memrealtime s[{S_TAG}:{S_TAG+1}]")
    LH = 3 if "map2" in OPT else 2 if "map1" in OPT else 5 if "map4" in OPT else 4
    a(f"s_and_b32 s{S_T}, s2, 7")
    a(f"s_lshr_b32 s{S_A}, s2, 3")
    a(f"s_and_b32 s{S_HH}, s{S_T}, {(32 >> LH) - 1}")
    a(f"s_lshl_b32 s{S_HH}, s{S_HH}, {LH}")
    a(f"s_and_b32 s{S_B}, s{S_A}, {(1 << LH) - 1}")
    a(f"s_add_u32 s{S_HH}, s{S_HH}, s{S_B}")
    a(f"s_lshr_b32 s{S_QB}, s{S_T}, {5 - LH}")
    a(f"s_lshl_b32 s{S_QB}, s{S_QB}, {5 - LH}")
    a(f"s_lshr_b32 s{S_A}, s{S_A}, {LH}")
    a(f"s_add_u32 s{S_QB}, s{S_QB}, s{S_A}")
    if LH == 2:
        a(f"s_lshl_b32 s{S_B}, s{S_B}, 1")
    else:
        a(f"s_and_b32 s{S_B}, s{S_B}, 7")
        a(f"s_lshl_b32 s{S_A}, s{S_A}, 1")
    a(f"s_add_u32 s{S_R}, s{S_A}, s{S_B}")
    a(f"s_add_u32 s{S_R}, s{S_R}, s{S_T}")
    a(f"s_mul_i32 s{S_A}, s{S_R}, 37")
    a(f"s_lshr_b32 s{S_A}, s{S_A}, 8")
    a(f"s_mul_i32 s{S_A}, s{S_A}, 7")
    a(f"s_sub_u32 s{S_R}, s{S_R}, s{S_A}")
    if "norot" in OPT: a(f"s_mov_b32 s{S_R}, 0")
    a("v_lshrrev_b32 v1, 6, v0")
    a(f"v_and_b32 v{V_LANE}, 63, v0")
    a(f"v_readfirstlane_b32 s{S_W}, v1")
    a(f"v_lshlrev_b32 v{V_L16}, 4, v{V_LANE}")
    a(f"s_lshl_b32 s{S_TT}, s{S_QB}, 3")
    a("s_nop 2")
    a(f"s_add_u32 s{S_TT}, s{S_TT}, s{S_W}")
    a(f"s_lshl_b32 s{S_W4K}, s{S_W}, 12")
    a(f"s_add_u32 s{S_XA}, s{S_W4K}, {L_XA}")
    a(f"s_add_u32 s{S_XB}, s{S_W4K}, {L_XB}")

    ACCQ, ACCK, ACCV = 16, 32, 48
    XF = 64
    V_XD, V_XR, V_WD, V_WR = 96, 100, 104, 105
    V_CUR, V_NXT, V_DM, V_FP, V_WOD, V_WOR, V_TAGV, V_KP, V_QR0, V_QR1, V_POLL = 112, 113, 114, 115, 116, 117, 118, 120, 121, 122, 124
    a(f"v_lshrrev_b32 v4, 3, v{V_LANE}")
    a(f"v_and_b32 v5, 7, v{V_LANE}")
    a(f"s_lshl_b32 s{S_T}, s{S_TT}, 5")
    a(f"v_add_u32 v6, s{S_T}, v4")
    a("v_mul_u32_u24 v6, 896, v6")
    a("v_lshrrev_b32 v7, 1, v4")
    a("v_xor_b32 v8, v7, v5")
    a("v_or_b32 v7, 4, v7")
    a("v_xor_b32 v7, v7, v5")
    a(f"v_lshl_add_u32 v{V_XD}, v8, 4, v6")
    a("v_lshl_add_u32 v7, v7, 4, v6")
    a(f"v_add_u32 v{V_XD+1}, {8*896 - 1024}, v7")
    a(f"v_add_u32 v{V_XD+2}, {16*896 - 2048}, v{V_XD}")
    a(f"v_add_u32 v{V_XD+3}, {24*896 - 3072}, v7")
    a(f"v_mul_u32_u24 v5, 43, v{V_LANE}")
    a("v_lshrrev_b32 v5, 9, v5")
    a("v_mul_u32_u24 v6, 12, v5")
    a(f"v_sub_u32 v6, v{V_LANE}, v6")
    a("v_lshl_add_u32 v5, v1, 3, v5")
    a("v_mul_u32_u24 v5, 2688, v5")
    a("v_lshrrev_b32 v7, 2, v6")
    a("v_mul_u32_u24 v7, 896, v7")
    a("v_add_u32 v5, v5, v7")
    a("v_and_b32 v6, 3, v6")
    a("v_lshl_add_u32 v5, v6, 4, v5")
    a(f"s_and_b32 s{S_T}, s{S_HH}, 15")
    a(f"s_mul_i32 s{S_T}, s{S_T}, 56")
    a(f"v_add_u32 v{V_WD}, s{S_T}, v5")
    S_W768 = 67
    a(f"s_mul_i32 s{S_W768}, s{S_W}, 1536")
    pstamp(a, 2)
    a("s_waitcnt lgkmcnt(0)")
    pstamp(a, 3)
    srd(a, SX, 36, 37, X_BYTES)
    a(f"s_cmp_ge_u32 s{S_HH}, 16")
    a(f"s_cselect_b32 s{SW}, s44, s38")
    a(f"s_cselect_b32 s{SW+1}, s45, s39")
    a(f"s_mov_b32 s{SW+2}, {W_BYTES}")
    a(f"s_mov_b32 s{SW+3}, 0x00020000")

    vm = Cnt()
    lg = Cnt()
    def wait_vm(*tags):
        n = vm.need(*tags)
        if n is not None:
            a(f"s_waitcnt vmcnt({n})")
    def wait_lg(*tags):
        n = lg.need(*tags)
        if n is not None:
            a(f"s_waitcnt lgkmcnt({min(n, 15)})")
    def chunk_of(s):
        a(f"s_add_u32 s{S_A}, s{S_R}, {s}")
        a(f"s_sub_u32 s{S_B}, s{S_A}, 7")
        a(f"s_min_u32 s{S_A}, s{S_A}, s{S_B}")
    def dma_x(s):
        chunk_of(s)
        base = S_XA if (s & 1) == 0 else S_XB
        a(f"s_mov_b32 m0, s{base}")
        a(f"s_lshl_b32 s{S_B}, s{S_A}, 7")
        for i in range(4):
            a(f"buffer_load_dwordx4 v{V_XD+i}, s[{SX}:{SX+3}], s{S_B} offen offset:{i*1024} lds")
            vm.issue(f"X{s}")
    def dma_w(s):
        chunk_of(s)
        a("s_mov_b32 exec_hi, 0xffff")
        a(f"s_mul_i32 s{S_A}, s{S_A}, {64*2688}")
        a(f"s_add_u32 m0, s{S_W768}, {64*s*192}")
        a(f"s_add_u32 s{S_B}, s{S_A}, {4*2688 - 768}")
        a(f"buffer_load_dwordx4 v{V_WD}, s[{SW}:{SW+3}], s{S_A} offen lds")
        a(f"buffer_load_dwordx4 v{V_WD}, s[{SW}:{SW+3}], s{S_B} offen offset:768 lds")
        vm.issue(f"W{s}", 2)
        a("s_mov_b32 exec_hi, -1")

    dma_x(0)
    dma_w(0)
    pstamp(a, 4)
    dma_x(1)
    dma_w(1)
    pstamp(a, 5)
    srd(a, SG, 48, 49, 896)
    srd(a, SWS, 54, 55, WS_SIZE)
    srd(a, SOUT, 50, 51, OUT_BYTES)
    srd(a, SDBG, 52, 53, 256)
    a(f"s_cmp_ge_u32 s{S_W}, 4")
    a(f"s_cselect_b32 s{SWO}, s46, s40")
    a(f"s_cselect_b32 s{SWO+1}, s47, s41")
    a(f"s_sub_u32 s{SWO}, s{SWO}, 4096")
    a(f"s_subb_u32 s{SWO+1}, s{SWO+1}, 0")
    a(f"s_mov_b32 s{SWO+2}, {WO_BYTES + 4096}")
    a(f"s_mov_b32 s{SWO+3}, 0x00020000")
    a(f"s_lshl_b32 s{S_T}, s{S_HH}, 18")
    a(f"s_add_u32 s{SKV}, s54, s{S_T}")
    a(f"s_addc_u32 s{SKV+1}, s55, 0")
    a(f"s_mov_b32 s{SKV+2}, 262144")
    a(f"s_mov_b32 s{SKV+3}, 0x00020000")
    a(f"s_or_b32 s{S_TAG}, s{S_TAG}, 1")
    a(f"s_or_b32 s{S_T}, s2, s{S_W}")
    a(f"s_cmp_lg_u32 s{S_T}, 0")
    a("s_cbranch_scc1 L_NOTAG")
    a(f"v_mov_b32 v4, s{S_TAG}")
    a(f"v_mov_b32 v5, s{S_TAG+1}")
    a("v_mov_b32 v6, 0")
    a("s_mov_b64 exec, 1")
    a(f"buffer_store_dwordx2 v[4:5], v6, s[{SDBG}:{SDBG+3}], 0 offen sc1")
    a("s_mov_b64 exec, -1")
    a.label("L_NOTAG")
    if "etouch" in OPT:
        a(f"s_and_b32 s{S_T}, s{S_W}, 3")
        a(f"s_cmp_lg_u32 s{S_T}, 3")
        a("s_cbranch_scc1 L_NOTOUCH")
        a("v_mov_b32 v6, 0")
        a(f"s_lshl_b32 s{S_T}, s{S_TT}, 12")
        a("s_mov_b64 exec, 1")
        a(f"buffer_load_dword v123, v6, s[{SKV}:{SKV+3}], s{S_T} offen")
        a(f"s_movk_i32 s{S_T}, 4096")
        a(f"buffer_load_dword v123, v6, s[{SWO}:{SWO+3}], s{S_T} offen")
        a(f"s_mov_b32 s{S_T}, {F3_BASE + 32768}")
        a(f"buffer_load_dword v123, v6, s[{SWS}:{SWS+3}], s{S_T} offen")
        a(f"s_lshl_b32 s{S_T}, s{S_QB}, 8")
        a(f"s_add_u32 s{S_T}, s{S_T}, s{S_HH}")
        a(f"s_lshl_b32 s{S_T}, s{S_T}, 11")
        a(f"s_add_u32 s{S_T}, s{S_T}, {OF_BASE}")
        a(f"buffer_load_dword v123, v6, s[{SWS}:{SWS+3}], s{S_T} offen")
        a(f"s_mul_i32 s{S_T}, s{S_QB}, {256*896}")
        a(f"buffer_load_dword v123, v6, s[{SOUT}:{SOUT+3}], s{S_T} offen")
        a(f"buffer_load_dword v123, v6, s[{SG}:{SG+3}], 0 offen")
        a("s_mov_b64 exec, -1")
        a.label("L_NOTOUCH")
    if "pf" in OPT:
        a(f"s_cmp_lg_u32 s{S_W}, 6")
        a("s_cbranch_scc1 L_NOPF")
        a("s_getpc_b64 s[40:41]")
        a.label("L_PC")
        a(f"s_sub_u32 s40, s40, L_PC-{KNAME}")
        a("s_subb_u32 s41, s41, 0")
        a(f"s_mov_b32 s42, L_CODE_END-{KNAME}")
        a("s_mov_b32 s43, 0x00020000")
        a(f"s_lshr_b32 s{S_T}, s2, 3")
        a(f"s_lshl_b32 s{S_T}, s{S_T}, 10")
        a(f"buffer_load_dwordx4 v[12:15], v{V_L16}, s[40:43], s{S_T} offen")
        a.label("L_NOPF")
    a(f"v_and_b32 v4, 31, v{V_LANE}")
    a(f"v_lshrrev_b32 v5, 5, v{V_LANE}")
    a("v_lshrrev_b32 v6, 1, v4")
    a("v_and_b32 v6, 7, v6")
    a("v_lshlrev_b32 v7, 7, v4")
    a(f"v_add_u32 v7, s{S_XB}, v7")
    for j in range(4):
        a(f"v_add_u32 v8, {2*j}, v5")
        a("v_xor_b32 v8, v8, v6")
        a(f"v_lshl_add_u32 v{V_XR+j}, v8, 4, v7")
    a(f"v_bfe_u32 v6, v{V_LANE}, 2, 2")
    a("v_lshl_add_u32 v6, v5, 3, v6")
    a("v_mul_u32_u24 v6, 192, v6")
    a(f"v_bfe_u32 v7, v{V_LANE}, 4, 1")
    a("v_lshl_add_u32 v6, v7, 5, v6")
    a(f"v_and_b32 v7, 3, v{V_LANE}")
    a(f"v_lshl_add_u32 v{V_WR}, v7, 3, v6")
    a(f"v_add_u32 v{V_WR+1}, {14*3072}, v{V_WR}")
    S_T0, S_FT0, S_WOM, S_WOG, S_WOX, S_KPS = 44, 3, 45, 46, 47, 48
    a(f"s_and_b32 s{S_A}, s{S_W}, 3")
    a(f"s_lshr_b32 s{S_B}, s{S_W}, 2")
    a(f"s_mov_b32 s{S_KPS}, s{S_B}")
    a(f"s_lshl_b32 s{S_T}, s{S_A}, 1")
    a(f"s_add_u32 s{S_T0}, s{S_T}, s{S_B}")
    a(f"s_lshl_b32 s{S_T}, s{S_T0}, 12")
    a(f"s_add_u32 s{S_T}, s{S_T}, {L_XB}")
    a(f"v_add_u32 v{V_QR0}, s{S_T}, v{V_L16}")
    a(f"s_xor_b32 s{S_T}, s{S_T0}, 1")
    a(f"s_lshl_b32 s{S_T}, s{S_T}, 12")
    a(f"s_add_u32 s{S_T}, s{S_T}, {L_XB}")
    a(f"v_add_u32 v{V_QR1}, s{S_T}, v{V_L16}")
    a(f"s_lshl_b32 s{S_T}, s{S_B}, 12")
    a(f"v_add_u32 v{V_KP}, s{S_T}, v{V_L16}")
    a(f"v_add_u32 v{V_DM}, s{S_W4K}, v{V_L16}")
    a(f"s_lshl_b32 s{S_T}, s{S_HH}, 3")
    a(f"s_add_u32 s{S_T}, s{S_T}, s{S_W}")
    a(f"s_lshl_b32 s{S_T}, s{S_T}, 6")
    a(f"s_add_u32 s{S_T}, s{S_T}, {F2_BASE}")
    a(f"v_add_u32 v5, s{S_QB}, v{V_LANE}")
    a("v_and_b32 v5, 7, v5")
    a(f"v_lshl_add_u32 v{V_FP}, v5, 3, s{S_T}")
    a(f"s_mov_b32 s{S_FB}, 0")
    a(f"s_mov_b32 s{S_RDY}, 1")
    a(f"s_and_b32 s{S_T}, s{S_HH}, 3")
    a(f"s_lshl_b32 s{S_FT0}, s{S_T}, 2")
    a(f"s_cmp_eq_u32 s{S_T}, 3")
    a(f"s_cselect_b32 s{S_FT0}, 11, s{S_FT0}")
    a(f"v_lshrrev_b32 v4, 4, v{V_LANE}")
    a(f"v_mul_u32_u24 v5, {4*896}, v4")
    a(f"v_and_b32 v6, 15, v{V_LANE}")
    a("v_lshl_add_u32 v5, v6, 4, v5")
    a(f"s_lshl_b32 s{S_T}, s{S_FT0}, 6")
    a(f"v_add_u32 v{V_WOD}, s{S_T}, v5")
    a(f"s_mul_i32 s{S_WOM}, s{S_W}, 4352")
    a(f"s_add_u32 s{S_WOM}, s{S_WOM}, {L_WO}")
    a(f"v_bfe_u32 v4, v{V_LANE}, 2, 2")
    a("v_mul_u32_u24 v4, 1088, v4")
    a(f"v_lshrrev_b32 v5, 5, v{V_LANE}")
    a("v_lshl_add_u32 v4, v5, 8, v4")
    a(f"v_bfe_u32 v6, v{V_LANE}, 4, 1")
    a("v_lshl_add_u32 v4, v6, 5, v4")
    a(f"v_and_b32 v6, 3, v{V_LANE}")
    a("v_lshl_add_u32 v4, v6, 3, v4")
    a(f"v_add_u32 v{V_WOR}, s{S_WOM}, v4")
    a(f"s_mul_i32 s{S_WOG}, s{S_A}, {4*28*896}")
    a(f"s_add_u32 s{S_WOG}, s{S_WOG}, 4096")
    a(f"s_mov_b32 s{S_WOX}, {16*896}")
    a(f"v_mov_b32 v6, {L_FB}")
    a("v_mov_b32 v7, 0")
    a("ds_write_b32 v6, v7")
    for r in range(16, 64):
        a(f"v_mov_b32 v{r}, 0")

    def read_x(s):
        off = (L_XA - L_XB) if (s & 1) == 0 else 0
        for j in range(4):
            a(f"ds_read_b128 {vr(XF + (s&1)*16 + 4*j, 4)}, v{V_XR+j} offset:{off}")
            lg.issue(f"XR{s}")
    def read_w(ks):
        base = V_WR if ks < 14 else V_WR + 1
        off = (ks % 14) * 3072
        st = ks & 1
        for seg in (1, 2, 0):
            d = st * 12 + seg * 4
            a(f"ds_read_b64_tr_b16 {ar(d,2)}, v{base} offset:{off + seg*64}")
            a(f"ds_read_b64_tr_b16 {ar(d+2,2)}, v{base} offset:{off + seg*64 + 768}")
            lg.issue(f"WR{ks}", 2)

    stamp(a, 2)
    pstamp(a, 6)
    wait_vm("X0")
    read_x(0)
    wait_vm("W0")
    pstamp(a, 7)
    a("s_barrier")
    pstamp(a, 8)
    stamp(a, 3)
    dbgt(a, 1)
    read_w(0)
    wait_lg("XR0")
    dma_x(2)
    dma_w(2)
    pstamp(a, 9)
    TKS = 17
    for o in OPT:
        if o.startswith("tks"): TKS = int(o[3:])
    for ks in range(28):
        s, j = divmod(ks, 4)
        if j == 2 and s + 1 < 7:
            wait_vm(f"X{s+1}")
            read_x(s + 1)
        if j == 3 and s + 1 < 7:
            wait_vm(f"W{s+1}")
            a("s_barrier")
        if ks + 1 < 28:
            read_w(ks + 1)
        wait_lg(f"WR{ks}", f"XR{s}")
        st = ks & 1
        x = vr(XF + (s & 1) * 16 + 4 * j, 4)
        w = lambda seg: ar(st * 12 + seg * 4, 4)
        a(f"v_mfma_f32_32x32x16_bf16 {vr(ACCK,16)}, {w(1)}, {x}, {vr(ACCK,16)}")
        a(f"v_mfma_f32_32x32x16_bf16 {vr(ACCV,16)}, {x}, {w(2)}, {vr(ACCV,16)}")
        a(f"v_mfma_f32_32x32x16_bf16 {vr(ACCQ,16)}, {w(0)}, {x}, {vr(ACCQ,16)}")
        if j == 3 and s + 3 < 7:
            wait_lg(f"XR{s+1}")
            dma_x(s + 3)
            dma_w(s + 3)
        if ks == 17 and "wpf" in OPT:
            a(f"s_lshr_b32 s{S_A}, s{S_HH}, 2")
            a(f"s_and_b32 s{S_A}, s{S_A}, 3")
            a(f"s_mul_i32 s{S_A}, s{S_A}, {28*896}")
            a(f"s_and_b32 s{S_B}, s{S_QB}, 1")
            a(f"s_mul_i32 s{S_B}, s{S_B}, {16*896}")
            a(f"s_add_u32 s{S_A}, s{S_A}, s{S_B}")
            a(f"s_add_u32 s{S_A}, s{S_A}, s{S_WOG}")
            for q in range(4):
                a(f"buffer_load_dword v123, v{V_WOD}, s[{SWO}:{SWO+3}], s{S_A} offen offset:{q*896}")
            vm.issue("PF", 4)
        if ks == TKS and "tlb" in OPT:
            a(f"s_and_b32 s{S_T}, s{S_W}, 3")
            a(f"s_cmp_eq_u32 s{S_T}, 3")
            a(f"s_cselect_b32 s{S_T}, 0, {OOB}")
            a(f"v_mov_b32 v6, s{S_T}")
            a(f"s_lshl_b32 s{S_T}, s{S_TT}, 12")
            a("s_mov_b64 exec, 1")
            a(f"buffer_load_dword v123, v6, s[{SKV}:{SKV+3}], s{S_T} offen")
            a(f"s_movk_i32 s{S_T}, 4096")
            a(f"buffer_load_dword v123, v6, s[{SWO}:{SWO+3}], s{S_T} offen")
            a(f"s_mov_b32 s{S_T}, {F3_BASE + 32768}")
            a(f"buffer_load_dword v123, v6, s[{SWS}:{SWS+3}], s{S_T} offen")
            a(f"s_lshl_b32 s{S_T}, s{S_QB}, 8")
            a(f"s_add_u32 s{S_T}, s{S_T}, s{S_HH}")
            a(f"s_lshl_b32 s{S_T}, s{S_T}, 11")
            a(f"s_add_u32 s{S_T}, s{S_T}, {OF_BASE}")
            a(f"buffer_load_dword v123, v6, s[{SWS}:{SWS+3}], s{S_T} offen")
            a(f"s_mul_i32 s{S_T}, s{S_QB}, {256*896}")
            a(f"buffer_load_dword v123, v6, s[{SOUT}:{SOUT+3}], s{S_T} offen")
            a(f"buffer_load_dword v123, v6, s[{SG}:{SG+3}], 0 offen")
            a("s_mov_b64 exec, -1")
            vm.issue("TOUCH", 6)
        if ks == 20:
            a("v_mov_b32 v9, 0")
            a(f"buffer_load_dwordx2 {vr(V_TAGV,2)}, v9, s[{SDBG}:{SDBG+3}], 0 offen sc1")
            vm.issue("TAG")
    stamp(a, 4)
    qstamp(a, 2)
    dbgt(a, 2)
    pstamp(a, 10)
    PK = 64
    a(f"s_lshl_b32 s{S_A}, s{S_TT}, 12")
    a(f"v_add_u32 v4, s{S_XA}, v{V_L16}")
    a(f"v_add_u32 v5, s{S_XB}, v{V_L16}")
    a(f"s_mov_b32 s{S_B}, {f32hex(QSCALE)}")
    a("s_nop 5")
    for m in range(8):
        a(f"v_cvt_pk_bf16_f32 v{PK+m}, v{ACCK+2*m}, v{ACCK+2*m+1}")
    a("s_mov_b32 exec_lo, 0")
    a(f"v_mov_b32 v{PK+6}, 0x3f803f80")
    a(f"v_mov_b32 v{PK+7}, 0x00003f80")
    a("s_mov_b32 exec_lo, -1")
    for m in range(2):
        a(f"buffer_store_dwordx4 {vr(PK+4*m,4)}, v{V_L16}, s[{SKV}:{SKV+3}], s{S_A} offen offset:{1024*m} sc1")
    for r in range(16):
        a(f"v_mul_f32 v{ACCQ+r}, s{S_B}, v{ACCQ+r}")
    for m in range(8):
        a(f"v_cvt_pk_bf16_f32 v{PK+16+m}, v{ACCQ+2*m}, v{ACCQ+2*m+1}")
    a("s_mov_b32 exec_lo, 0")
    a(f"v_mov_b32 v{PK+16+6}, 0")
    a(f"v_mov_b32 v{PK+16+7}, 0")
    a("s_mov_b32 exec_lo, -1")
    SD = ACCK
    a(f"v_mfma_f32_32x32x16_bf16 {vr(SD,16)}, {vr(PK,4)}, {vr(PK+16,4)}, 0")
    a(f"v_mfma_f32_32x32x16_bf16 {vr(SD,16)}, {vr(PK+4,4)}, {vr(PK+20,4)}, {vr(SD,16)}")
    for m in range(8):
        a(f"v_cvt_pk_bf16_f32 v{PK+8+m}, v{ACCV+2*m}, v{ACCV+2*m+1}")
    if "vzero" in OPT:
        a("s_mov_b32 exec_lo, 0xe0000000")
        a("s_mov_b32 exec_hi, 0xe0000000")
        for m in range(8):
            a(f"v_mov_b32 v{PK+8+m}, 0")
    a("s_mov_b32 exec_lo, 0x10000000")
    a("s_mov_b32 exec_hi, 0x10000000")
    for m in range(8):
        a(f"v_mov_b32 v{PK+8+m}, 0x3f803f80")
    a("s_mov_b64 exec, -1")
    for m in range(2, 4):
        a(f"buffer_store_dwordx4 {vr(PK+4*m,4)}, v{V_L16}, s[{SKV}:{SKV+3}], s{S_A} offen offset:{1024*m} sc1")
    for m in range(4):
        a(f"ds_write_b128 v4, {vr(PK+4*m,4)} offset:{1024*m}")
    a(f"ds_write_b128 v5, {vr(PK+16,4)}")
    def split_m(m, q6):
        a(f"v_sub_f32 v{m}, 0, v{m}")
        a(f"v_and_b32 v6, 0xffff0000, v{m}")
        a(f"v_sub_f32 v{m}, v{m}, v6")
        a(f"v_and_b32 v7, 0xffff0000, v{m}")
        a(f"v_sub_f32 v{m}, v{m}, v7")
        a("v_lshrrev_b32 v6, 16, v6")
        a("s_mov_b32 exec_lo, 0")
        a(f"v_or_b32 v{q6}, v6, v7")
        a(f"v_lshrrev_b32 v{q6+1}, 16, v{m}")
        a("s_mov_b32 exec_lo, -1")
    a(f"v_max3_f32 v4, v{SD}, v{SD+1}, v{SD+2}")
    a(f"v_max3_f32 v6, v{SD+3}, v{SD+4}, v{SD+5}")
    a(f"v_max3_f32 v4, v4, v{SD+6}, v{SD+7}")
    a(f"v_max3_f32 v6, v6, v{SD+8}, v{SD+9}")
    a(f"v_max3_f32 v4, v4, v{SD+10}, v{SD+11}")
    a(f"v_max3_f32 v6, v6, v{SD+12}, v{SD+13}")
    a(f"v_max3_f32 v4, v4, v{SD+14}, v{SD+15}")
    a("v_max_f32 v4, v4, v6")
    a("v_mov_b32 v6, v4")
    a("s_nop 1")
    a("v_permlane32_swap_b32 v4, v6")
    a("s_nop 0")
    a("v_max_f32 v4, v4, v6")
    split_m(4, PK + 16 + 6)
    a(f"ds_write_b128 v5, {vr(PK+20,4)} offset:1024")
    qstamp(a, 3)
    a(f"s_mov_b32 s{S_SPIN}, {SPIN_MAX}")
    a.label("L_TAG")
    a("s_waitcnt vmcnt(0)")
    a(f"v_readfirstlane_b32 s{S_TAG}, v{V_TAGV}")
    a(f"v_readfirstlane_b32 s{S_TAG+1}, v{V_TAGV+1}")
    a(f"s_sub_u32 s{S_SPIN}, s{S_SPIN}, 1")
    a(f"s_cmp_eq_u32 s{S_TAG}, 0")
    a("s_cbranch_scc1 L_TAGSLOW")
    a.label("L_TAG_OK")
    qstamp(a, 4)
    a("s_mov_b64 exec, 1")
    a(f"buffer_store_dwordx2 {vr(V_TAGV,2)}, v{V_FP}, s[{SWS}:{SWS+3}], 0 offen sc1")
    a("s_mov_b64 exec, -1")
    a("s_waitcnt lgkmcnt(0)")
    a("s_barrier")
    lg.clear()

    a.raw("; ================= P2: attention =================")
    Q = [8, 16]
    S = [24, 40]
    O = [56, 72]
    P = 88
    KR, VR = 96, 104
    a(f"ds_read_b128 {vr(Q[0],4)}, v{V_QR1}")
    a(f"ds_read_b128 {vr(Q[0]+4,4)}, v{V_QR1} offset:1024")
    a(f"ds_read_b128 {vr(Q[1],4)}, v{V_QR0}")
    a(f"ds_read_b128 {vr(Q[1]+4,4)}, v{V_QR0} offset:1024")
    a.label("L_PRIME")
    a(f"v_add_u32 v{V_CUR}, {L_RING[0]}, v{V_KP}")
    a(f"v_add_u32 v{V_NXT}, {L_RING[1]}, v{V_KP}")
    a(f"ds_read_b128 {vr(KR,4)}, v{V_CUR}")
    a(f"ds_read_b128 {vr(KR+4,4)}, v{V_CUR} offset:1024")
    a(f"ds_read_b128 {vr(VR,4)}, v{V_CUR} offset:2048")
    a(f"s_mov_b32 s{S_ST}, 0")
    a(f"s_mov_b32 s{S_CUR}, {L_RING[0]}")
    a(f"s_mov_b32 s{S_NXT}, {L_RING[1]}")
    a(f"s_mov_b32 s{S_PRV}, {L_RING[2]}")
    for r in range(16):
        a(f"v_mov_b32 v{O[0]+r}, 0")
    for r in range(4):
        a(f"v_mov_b32 v{P+4+r}, 0")
        a(f"v_mov_b32 v{VR+4+r}, 0")
    a("s_waitcnt lgkmcnt(0)")
    a(f"v_mfma_f32_32x32x16_bf16 {vr(S[0],16)}, {vr(KR,4)}, {vr(Q[0],4)}, 0")
    a(f"v_mfma_f32_32x32x16_bf16 {vr(S[0],16)}, {vr(KR+4,4)}, {vr(Q[0]+4,4)}, {vr(S[0],16)}")
    for r in range(16):
        a(f"v_mov_b32 v{O[1]+r}, 0")
    a(f"s_cmp_lg_u32 s{S_FB}, 0")
    a("s_cbranch_scc1 L_LOOP")
    a("s_barrier")
    a(f"buffer_load_dwordx2 {vr(V_POLL,2)}, v{V_FP}, s[{SWS}:{SWS+3}], 0 offen sc1")
    stamp(a, 5)
    qstamp(a, 5)
    S_D1 = 49
    a(f"s_mov_b32 s{S_D1}, 0")
    a("s_movk_i32 s50, 0xfe")

    S_REM = 50
    PR = [V_POLL, 126, 122]
    def poll_issue(r):
        a(f"buffer_load_dwordx2 {vr(r,2)}, v{V_FP}, s[{SWS}:{SWS+3}], 0 offen sc1")
    def poll_eval(r, n=0):
        a(f"s_waitcnt vmcnt({n})")
        a(f"v_cmp_eq_u64 vcc, s[{S_TAG}:{S_TAG+1}], {vr(r,2)}")
        a("s_nop 3")
        a(f"s_and_b32 s{S_RDY}, vcc_lo, 0xff")
    def avail():
        if "adapt" in OPT:
            a(f"s_and_b32 s{S_C}, s{S_RDY}, s{S_REM}")
        else:
            a(f"s_sub_u32 s{S_C}, 0, s{S_REM}")
            a(f"s_and_b32 s{S_C}, s{S_C}, s{S_REM}")
            a(f"s_and_b32 s{S_C}, s{S_C}, s{S_RDY}")
    def poll_until(label):
        a(f"s_mov_b32 s{S_SPIN}, {SPIN_MAX}")
        a.label(label)
        avail()
        a(f"s_cbranch_scc1 {label}_OK")
        poll_issue(V_POLL)
        a(f"s_sub_u32 s{S_SPIN}, s{S_SPIN}, 1")
        poll_eval(V_POLL)
        a(f"s_cmp_lg_u32 s{S_SPIN}, 0")
        a(f"s_cbranch_scc1 {label}")
        a(f"s_mov_b32 s{S_C}, s{S_REM}")
        a.label(label + "_OK")

    def kv_dma(slot_sgpr):
        a(f"s_ff1_i32_b32 s{S_C}, s{S_C}")
        a(f"s_bitset0_b32 s{S_REM}, s{S_C}")
        a(f"s_add_u32 s{S_A}, s{S_QB}, s{S_C}")
        a(f"s_and_b32 s{S_A}, s{S_A}, 7")
        a(f"s_add_u32 m0, s{slot_sgpr}, s{S_W4K}")
        a(f"s_lshl_b32 s{S_A}, s{S_A}, 15")
        for i in range(4):
            a(f"buffer_load_dwordx4 v{V_DM}, s[{SKV}:{SKV+3}], s{S_A} offen offset:{i*1024} sc1 lds")

    def wo_dma():
        a(f"s_mov_b32 m0, s{S_WOM}")
        for q in range(4):
            a(f"s_sub_u32 s{S_T}, s{S_WOG}, {q*192}")
            if "nowd" not in OPT:
                a(f"buffer_load_dwordx4 v{V_WOD}, s[{SWO}:{SWO+3}], s{S_T} offen offset:{q*1088} lds")
        a(f"s_add_u32 s{S_WOG}, s{S_WOG}, s{S_WOX}")
        a(f"s_xor_b32 s{S_WOX}, s{S_WOX}, {(16*896) ^ (12*896)}")

    def wo_read(c):
        for f in range(4 if "nowr" not in OPT else 0):
            d = (c * 4 + f) * 4
            a(f"ds_read_b64_tr_b16 {ar(d,2)}, v{V_WOR} offset:{f*64}")
            a(f"ds_read_b64_tr_b16 {ar(d+2,2)}, v{V_WOR} offset:{f*64 + 512}")

    def wo_read_half(c, hf):
        for f in range(2 * hf, 2 * hf + 2):
            d = (c * 4 + f) * 4
            a(f"ds_read_b64_tr_b16 {ar(d,2)}, v{V_WOR} offset:{f*64}")
            a(f"ds_read_b64_tr_b16 {ar(d+2,2)}, v{V_WOR} offset:{f*64 + 512}")
    def wo_piece(st, q):
        row0 = (st >> 1) * 28 + (st & 1) * 16
        a(f"s_mov_b32 m0, s{S_WOM}")
        a(f"s_add_u32 s{S_T}, s{S_WOG}, {row0*896 - q*192}")
        a(f"buffer_load_dwordx4 v{V_WOD}, s[{SWO}:{SWO+3}], s{S_T} offen offset:{q*1088} lds")
    S_KVS = 51
    def send_partial():
        a(f"s_xor_b32 s{S_A}, s{S_W4K}, {4*4096}")
        a(f"s_add_u32 s{S_A}, s{S_A}, {L_RED}")
        a(f"v_add_u32 v4, s{S_A}, v{V_L16}")
        for q in range(4):
            a(f"ds_write_b128 v4, {vr(O[0]+4*q,4)} offset:{q*1024}")
    def kv_piece(st, i):
        a(f"s_add_u32 m0, s{S_W4K}, {L_RING[(st + 2) % 3]}")
        a("s_nop 0")
        a(f"buffer_load_dwordx4 v{V_DM}, s[{SKV}:{SKV+3}], s{S_KVS} offen offset:{i*1024} sc1 lds")
    def stage(first, st=None):
        sfx = "F" if first else ("L" if st is None else f"S{st}")
        for u in range(8):
            n, T = u >> 1, u & 1
            Sc, Sn = S[T], S[1 - T]
            def E(i):
                a(f"v_exp_f32 v{Sc+i}, v{Sc+i}")
            def C(i):
                a(f"v_cvt_pk_bf16_f32 v{P+i}, v{Sc+2*i}, v{Sc+2*i+1}")
            def addr(nn):
                if st is None:
                    return (V_CUR, nn * 8192) if nn < 4 else (V_NXT, 0)
                slot = L_RING[(st + (nn >> 2)) % 3]
                return (V_CUR, (nn & 3) * 8192) if slot == L_RING[0] else (V_KP, slot + (nn & 3) * 8192)
            if u == 6:
                if first: qstamp(a, 7)
                a("s_waitcnt vmcnt(0) lgkmcnt(0)")
                if first: qstamp(a, 8)
                a("s_barrier")
                if first: qstamp(a, 9)
            elif T == 1:
                a("s_waitcnt lgkmcnt(0)" if "w1" in OPT else "s_waitcnt lgkmcnt(1)" if "w2" in OPT else "s_waitcnt lgkmcnt(2)")
            if u == 6 and st is not None:
                wo_read_half(st, 0)
            if T == 0 and "noprio" not in OPT:
                if "prio2" in OPT:
                    if u in (6, 2): a(f"s_setprio {1 if u == 6 else 0}")
                elif "prio3" in OPT:
                    a(f"s_setprio {[2,1,0,3][u//2] if u != 4 else 0}")
                else:
                    a(f"s_setprio {3 - ((u + 2) % 8) // 2}")
            last = (st == 7 and u == 7)
            if not last:
                a(f"v_mfma_f32_32x32x16_bf16 {vr(Sn,16)}, {vr(KR,4)}, {vr(Q[1-T],4)}, 0")
            if T == 0:
                va, off = addr(n + 1)
                a(f"ds_read_b128 {vr(KR,4)}, v{va} offset:{off}")
            E(0); E(1); E(2); E(3)
            if T == 1 and "w1" not in OPT and "w2" not in OPT:
                a("s_waitcnt lgkmcnt(1)")
            a(f"v_mfma_f32_32x32x16_bf16 {vr(O[1-T],16)}, {vr(VR+4,4)}, {vr(P+4,4)}, {vr(O[1-T],16)}")
            if T == 0:
                va, off = addr(n)
                a(f"ds_read_b128 {vr(VR+4,4)}, v{va} offset:{off+3072}")
            C(0); C(1)
            if u in (6, 7) and st is not None and st < 6:
                if u == 6:
                    a(f"s_bitcmp1_b32 s{S_RDY}, {st + 2}")
                    a(f"s_cbranch_scc0 L_SLOW{st}")
                    a.label(f"L_FAST{st}")
                    a(f"s_add_u32 s{S_KVS}, s{S_QB}, {st + 2}")
                    a(f"s_and_b32 s{S_KVS}, s{S_KVS}, 7")
                    a(f"s_lshl_b32 s{S_KVS}, s{S_KVS}, 15")
                kv_piece(st, 2 * (u - 6))
            E(4); E(5); E(6)
            if T == 1 and "w1" not in OPT:
                a("s_waitcnt lgkmcnt(0)")
            if not last:
                a(f"v_mfma_f32_32x32x16_bf16 {vr(Sn,16)}, {vr(KR+4,4)}, {vr(Q[1-T]+4,4)}, {vr(Sn,16)}")
            if T == 0:
                va, off = addr(n + 1)
                a(f"ds_read_b128 {vr(KR+4,4)}, v{va} offset:{off+1024}")
            E(7); C(2); C(3)
            if u == 7 and st is not None:
                wo_read_half(st, 1)
            if st and u in (1, 2):
                wo_piece(st, 2 * u - 1)
            E(8); E(9); E(10)
            if T == 0:
                a("s_waitcnt lgkmcnt(3)")
            a(f"v_mfma_f32_32x32x16_bf16 {vr(O[T],16)}, {vr(VR,4)}, {vr(P,4)}, {vr(O[T],16)}")
            if T == 1 and not last:
                va, off = addr(n + 1)
                a(f"ds_read_b128 {vr(VR,4)}, v{va} offset:{off+2048}")
            if last:
                send_partial()
            E(11); C(4); C(5)
            if first and u == 0:
                poll_issue(PR[1])
                for q in range(4): wo_piece(0, q)
            if first and 1 <= u <= 5:
                a(f"s_cmp_lg_u32 s{S_D1}, 0")
                a(f"s_cbranch_scc1 L_CK{u}")
                poll_eval(PR[(u - 1) % 3], 5 if (u <= 2 and "nop3" not in OPT) else 1)
                if u == 5:
                    poll_until("L_P1")
                else:
                    avail()
                    a(f"s_cbranch_scc1 L_GO{u}")
                    poll_issue(PR[(u + 1) % 3])
                    a(f"s_branch L_CK{u}")
                    a.label(f"L_GO{u}")
                qstamp(a, 6)
                kv_dma(S_NXT)
                a(f"s_mov_b32 s{S_D1}, 1")
                a.label(f"L_CK{u}")
            if st and u in (0, 1):
                wo_piece(st, 2 * u)
            if u in (6, 7) and st is None:
                a(f"s_cmp_lg_u32 s{S_KPS}, {u - 6}")
                a(f"s_cbranch_scc1 L_NODMA{u}{sfx}")
                a(f"s_cmp_eq_u32 s{S_REM}, 0")
                a(f"s_cbranch_scc1 L_NODMA{u}{sfx}")
                poll_until(f"L_P2{u}{sfx}")
                kv_dma(S_PRV)
                a.label(f"L_NODMA{u}{sfx}")
            if u in (6, 7) and st is not None and st < 6:
                kv_piece(st, 2 * (u - 6) + 1)
            if u == 7 and st is None:
                a(f"s_mov_b32 s{S_T}, s{S_CUR}")
                a(f"s_mov_b32 s{S_CUR}, s{S_NXT}")
                a(f"s_mov_b32 s{S_NXT}, s{S_PRV}")
                a(f"s_mov_b32 s{S_PRV}, s{S_T}")
                a(f"v_add_u32 v{V_CUR}, s{S_CUR}, v{V_KP}")
                a(f"v_add_u32 v{V_NXT}, s{S_NXT}, v{V_KP}")
                a(f"s_add_u32 s{S_ST}, s{S_ST}, 1")
                a(f"s_cmp_lt_u32 s{S_ST}, 8")
            E(12); E(13); E(14); E(15); C(6); C(7)

    if "solo" in OPT:
        a(f"s_cmp_ge_u32 s{S_W}, 4")
        a("s_cbranch_scc1 L_END")
    stage(True, 0)
    stamp(a, 6)
    qstamp(a, 10)
    dbgt(a, 3)
    for st in range(1, 8):
        stage(False, st)
    a("s_nop 0")
    a.label("L_POST")
    stamp(a, 7)
    rstamp(a, 2)
    if "solo" in OPT:
        stamp_flush(a, 8, S_W)
        a("s_endpgm")
    dbgt(a, 4)
    GX, GW = S[1], KR
    a(f"s_lshr_b32 s{S_C}, s{S_HH}, 2")
    a(f"v_mfma_f32_32x32x16_bf16 {vr(O[1],16)}, {vr(VR+4,4)}, {vr(P+4,4)}, {vr(O[1],16)}")
    a(f"s_lshl_b32 s{S_A}, s{S_QB}, 3")
    a(f"s_add_u32 s{S_C}, s{S_C}, s{S_A}")
    a(f"s_lshl_b32 s{S_A}, s{S_C}, 3")
    a(f"s_add_u32 s{S_A}, s{S_A}, s{S_W}")
    a(f"s_mul_i32 s{S_A}, s{S_A}, {4*896}")
    a(f"v_lshrrev_b32 v6, 4, v{V_LANE}")
    a("v_mul_u32_u24 v6, 896, v6")
    a(f"v_and_b32 v7, 15, v{V_LANE}")
    a("v_lshlrev_b32 v7, 4, v7")
    a("v_add_u32 v6, v6, v7")
    a("s_waitcnt lgkmcnt(0)")
    for q in range(4):
        a(f"buffer_load_dwordx4 {vr(GX+4*q,4)}, v6, s[{SX}:{SX+3}], s{S_A} offen offset:{q*256}")
    for q in range(4):
        a(f"buffer_load_dwordx4 {vr(GW+4*q,4)}, v7, s[{SG}:{SG+3}], 0 offen offset:{q*256}")
    a(f"v_add_u32 v5, s{S_XA}, v{V_L16}")
    a(f"v_mov_b32 v6, {f32hex(2.0**39)}")
    a(f"v_max_f32 v7, v{O[0]+12}, v{O[1]+12}")
    a(f"v_add_f32 v4, v{O[0]+12}, v{O[1]+12}")
    a("v_cmp_nlt_f32 vcc, v7, v6")
    a(f"v_cmp_u_f32 s[{S_A}:{S_A+1}], v4, v4")
    a(f"v_mov_b32 v6, {L_FB}")
    a("v_mov_b32 v7, 1")
    a("s_nop 1")
    a(f"s_or_b32 s{S_A}, vcc_hi, s{S_A+1}")
    a("s_cbranch_scc0 L_NOVOTE")
    a("ds_write_b32 v6, v7")
    a.label("L_NOVOTE")
    a("s_waitcnt lgkmcnt(0)")
    a("s_barrier")
    rstamp(a, 3)
    a("ds_read_b32 v7, v6")
    for q in range(4):
        a(f"ds_read_b128 {vr(S[0]+4*q,4)}, v5 offset:{q*1024}")
    a(f"s_cmp_lg_u32 s{S_FB}, 0")
    a("s_cbranch_scc1 L_FIN")
    a("s_waitcnt lgkmcnt(4)")
    a(f"v_readfirstlane_b32 s{S_A}, v7")
    a("s_nop 3")
    a(f"s_cmp_lg_u32 s{S_A}, 0")
    a("s_cbranch_scc1 L_FALLBACK")
    a.label("L_FIN")
    a("s_waitcnt lgkmcnt(0)")
    for r in range(16):
        a(f"v_add_f32 v{O[1]+r}, v{O[1]+r}, v{S[0]+r}")
    a(f"v_mov_b32 v4, v{O[1]+12}")
    a(f"v_mov_b32 v5, v{O[1]+12}")
    a(f"s_lshl_b32 s{S_A}, s{S_QB}, 3")
    a(f"s_add_u32 s{S_A}, s{S_A}, s{S_T0}")
    a("v_permlane32_swap_b32 v4, v5")
    a(f"s_lshl_b32 s{S_A}, s{S_A}, 5")
    a(f"s_add_u32 s{S_A}, s{S_A}, s{S_HH}")
    a("v_rcp_f32 v4, v5")
    a(f"s_lshl_b32 s{S_B}, s{S_A}, 11")
    a(f"s_add_u32 s{S_B}, s{S_B}, {OF_BASE}")
    for r in range(8):
        a(f"v_mul_f32 v{O[1]+r}, v{O[1]+r}, v4")
    for m in range(4):
        a(f"v_cvt_pk_bf16_f32 v{P+m}, v{O[1]+2*m}, v{O[1]+2*m+1}")
    a(f"buffer_store_dwordx4 {vr(P,4)}, v{V_L16}, s[{SWS}:{SWS+3}], s{S_B} offen sc1")
    for r in range(8, 16):
        a(f"v_mul_f32 v{O[1]+r}, v{O[1]+r}, v4")
    for m in range(4, 8):
        a(f"v_cvt_pk_bf16_f32 v{P+m}, v{O[1]+2*m}, v{O[1]+2*m+1}")
    a("s_mov_b32 exec_lo, 0")
    a(f"v_mov_b32 v{P+6}, 0")
    a(f"v_mov_b32 v{P+7}, 0")
    a("s_mov_b32 exec_lo, -1")
    a(f"buffer_store_dwordx4 {vr(P+4,4)}, v{V_L16}, s[{SWS}:{SWS+3}], s{S_B} offen offset:1024 sc1")
    stamp(a, 8)
    rstamp(a, 4)
    if "nop3" not in OPT:
        a.raw("; ================= P3: output projection =================")
        a(f"s_lshl_b32 s{S_B}, s{S_A}, 3")
        a(f"s_add_u32 s{S_B}, s{S_B}, {F3_BASE}")
        a(f"s_lshl_b32 s{S_A}, s{S_C}, 5")
        a(f"s_lshl_b32 s{S_T}, s{S_W}, 2")
        a(f"s_add_u32 s{S_A}, s{S_A}, s{S_T}")
        a(f"s_lshl_b32 s{S_T}, s{S_A}, 3")
        a(f"s_add_u32 s{S_T}, s{S_T}, {F3_BASE}")
        a(f"v_and_b32 v7, 3, v{V_LANE}")
        a(f"v_lshl_add_u32 v{V_FP}, v7, 3, s{S_T}")
        a(f"s_lshl_b32 s{S_A}, s{S_A}, 11")
        a(f"s_add_u32 s{S_A}, s{S_A}, {OF_BASE}")
        a("v_mov_b32 v4, 0")
        a("v_mov_b32 v5, 0")
        a("s_waitcnt vmcnt(2)")
        for d in range(0, 16, 2):
            a(f"v_dot2c_f32_bf16 v4, v{GX+d}, v{GW+d}")
            a(f"v_dot2c_f32_bf16 v5, v{GX+d+1}, v{GW+d+1}")
        a(f"v_lshrrev_b32 v6, 4, v{V_LANE}")
        a("v_lshlrev_b32 v6, 2, v6")
        a(f"s_lshl_b32 s{S_T}, s{S_W}, 4")
        a(f"s_add_u32 s{S_T}, s{S_T}, {L_GV}")
        a("v_add_f32 v4, v4, v5")
        a(f"v_add_u32 v6, s{S_T}, v6")
        for sh in (8, 4, 2, 1):
            a("s_nop 1")
            a(f"v_add_f32_dpp v4, v4, v4 row_ror:{sh} row_mask:0xf bank_mask:0xf")
        a(f"v_mul_f32 v4, {f32hex(-math.log2(math.e))}, v4")
        a("v_exp_f32 v4, v4")
        a("v_mov_b32 v7, 0")
        a("v_add_f32 v4, 1.0, v4")
        a("v_rcp_f32 v4, v4")
        a("s_nop 0")
        a("ds_write_b32 v6, v4")
        rstamp(a, 5)
        a("s_waitcnt vmcnt(0)")
        rstamp(a, 6)
        a("s_mov_b64 exec, 1")
        a(f"buffer_store_dwordx2 {vr(V_TAGV,2)}, v7, s[{SWS}:{SWS+3}], s{S_B} offen sc1")
        a("s_mov_b64 exec, -1")
        a("s_waitcnt lgkmcnt(0)")
        a("s_barrier")
        ACC = 8
        OFR = 72
        a(f"v_and_b32 v5, 31, v{V_LANE}")
        a("v_lshlrev_b32 v104, 2, v5")
        a(f"v_add_u32 v104, {L_GV}, v104")
        a("ds_read_b32 v105, v104")
        a(f"s_lshl_b32 s{S_T}, s{S_C}, 5")
        a(f"v_add_u32 v5, s{S_T}, v5")
        a("v_mul_u32_u24 v5, 896, v5")
        a(f"v_lshrrev_b32 v6, 5, v{V_LANE}")
        a("v_lshl_add_u32 v107, v6, 4, v5")
        a(f"s_lshl_b32 s{S_B}, s{S_FT0}, 6")
        a(f"s_lshl_b32 s{S_T}, s{S_W}, 5")
        a(f"s_add_u32 s{S_B}, s{S_B}, s{S_T}")
        a(f"s_and_b32 s{S_C}, s{S_HH}, 2")
        a(f"s_lshr_b32 s{S_T}, s{S_W}, 1")
        a(f"s_add_u32 s{S_C}, s{S_C}, s{S_T}")
        a(f"s_cmp_eq_u32 s{S_C}, 5")
        a(f"s_cselect_b32 s{S_C}, {OOB}, s{S_B}")
        a(f"s_lshl_b32 s{S_T}, s{S_W}, 11")
        a(f"v_add_u32 v108, s{S_T}, v{V_L16}")
        a(f"v_add_u32 v109, 0x10000, v108")
        a(f"s_lshl_b32 s{S_T}, s{S_W}, 14")
        a(f"v_add_u32 v110, s{S_T}, v{V_L16}")
        a(f"s_mov_b32 s{S_SPIN}, {SPIN_MAX}")
        a.label("L_P3")
        a(f"buffer_load_dwordx2 {vr(V_POLL,2)}, v{V_FP}, s[{SWS}:{SWS+3}], 0 offen sc1")
        a(f"s_sub_u32 s{S_SPIN}, s{S_SPIN}, 1")
        a(f"s_cmp_eq_u32 s{S_SPIN}, 0")
        a("s_cbranch_scc1 L_P3_OK")
        a("s_waitcnt vmcnt(0)")
        a(f"v_cmp_eq_u64 vcc, s[{S_TAG}:{S_TAG+1}], {vr(V_POLL,2)}")
        a("s_nop 3")
        a("s_cmp_eq_u64 vcc, -1")
        a("s_cbranch_scc0 L_P3")
        a.label("L_P3_OK")
        stamp(a, 9)
        rstamp(a, 7)
        a(f"s_add_u32 s{S_B}, s{S_A}, 4096")
        for i in range(8):
            a(f"buffer_load_dwordx4 {vr(OFR+4*i,4)}, v{V_L16}, s[{SWS}:{SWS+3}], s{S_A if i < 4 else S_B} offen offset:{(i&3)*1024} sc1")
        def wr(d, q):
            va = 108 if d < 4 else 109
            a(f"ds_write_b128 v{va}, {vr(ACC + 8*d + 4*q, 4)} offset:{L_R3 + (d&3)*16384 + q*1024}")
        for f in range(4):
            for i in range(8):
                if f == 0:
                    a(f"s_waitcnt vmcnt({7-i})")
                c = "0" if i == 0 else vr(ACC + 16*f, 16)
                a(f"v_mfma_f32_32x32x16_bf16 {vr(ACC+16*f,16)}, {ar((i*4+f)*4,4)}, {vr(OFR+4*i,4)}, {c}")
                if f > 0 and i < 2:
                    a("s_nop 3")
                if f > 0 and 3 <= i < 7:
                    wr(2*(f-1) + ((i-3) >> 1), (i-3) & 1)
        stamp(a, 10)
        rstamp(a, 8)
        a("s_nop 11")
        for d in (6, 7):
            for q in range(2):
                wr(d, q)
        a("s_waitcnt lgkmcnt(0)")
        rstamp(a, 9)
        a("s_barrier")
        rstamp(a, 10)
        for src in range(8):
            for q in range(2):
                a(f"ds_read_b128 {vr(ACC + 8*src + 4*q, 4)}, v110 offset:{L_R3 + src*2048 + q*1024}")
        a("v_sub_f32 v106, 1.0, v105")
        for br in range(2):
            b0 = ACC + 32 * br
            a(f"s_waitcnt lgkmcnt({12 - 8*br})")
            for r in range(8):
                a(f"v_add_f32 v{b0+r}, v{b0+r}, v{b0+8+r}")
            a(f"s_waitcnt lgkmcnt({8 - 8*br})")
            for r in range(8):
                a(f"v_add_f32 v{b0+16+r}, v{b0+16+r}, v{b0+24+r}")
            for r in range(8):
                a(f"v_add_f32 v{b0+r}, v{b0+r}, v{b0+16+r}")
        for r in range(8):
            a(f"v_mul_f32 v{ACC+r}, v{ACC+r}, v105")
        for r in range(8):
            a(f"v_fmac_f32 v{ACC+r}, v{ACC+32+r}, v106")
        for m in range(4):
            a(f"v_cvt_pk_bf16_f32 v{OFR+m}, v{ACC+2*m}, v{ACC+2*m+1}")
        a("s_nop 1")
        a(f"v_permlane32_swap_b32 v{OFR}, v{OFR+2}")
        a(f"v_permlane32_swap_b32 v{OFR+1}, v{OFR+3}")
        a(f"buffer_store_dwordx4 {vr(OFR,4)}, v107, s[{SOUT}:{SOUT+3}], s{S_C} offen")
    dbgt_flush(a, S_W)
    stamp_flush(a, 11 if "nop3" not in OPT else 9, S_W)
    a.label("L_END")
    a("s_endpgm")

    a.label("L_TAGSLOW")
    a(f"s_cmp_eq_u32 s{S_SPIN}, 0")
    a("s_cbranch_scc1 L_TAG_OK")
    a(f"buffer_load_dwordx2 {vr(V_TAGV,2)}, v9, s[{SDBG}:{SDBG+3}], 0 offen sc1")
    a("s_branch L_TAG")
    for st in range(6):
        a.label(f"L_SLOW{st}")
        a(f"s_mov_b32 s{S_SPIN}, {SPIN_MAX}")
        a.label(f"L_SLOWL{st}")
        poll_issue(V_POLL)
        a(f"s_sub_u32 s{S_SPIN}, s{S_SPIN}, 1")
        poll_eval(V_POLL)
        a(f"s_bitcmp1_b32 s{S_RDY}, {st + 2}")
        a(f"s_cbranch_scc1 L_FAST{st}")
        a(f"s_cmp_lg_u32 s{S_SPIN}, 0")
        a(f"s_cbranch_scc1 L_SLOWL{st}")
        a(f"s_branch L_FAST{st}")
    a.label("L_LOOP")
    stage(False)
    a("s_cbranch_scc1 L_LOOP")
    send_partial()
    a("s_branch L_POST")

    a.label("L_FALLBACK")
    a(f"s_mov_b32 s{S_FB}, 64")
    a("s_mov_b32 exec_lo, 0")
    for t in range(2):
        a(f"v_mov_b32 v{Q[t]+6}, 0")
        a(f"v_mov_b32 v{Q[t]+7}, 0")
    a("s_mov_b32 exec_lo, -1")
    a("v_mov_b32 v4, 0xff800000")
    a("v_mov_b32 v5, 0xff800000")
    a(f"s_mov_b32 s{S_A}, 0")
    a("s_waitcnt vmcnt(0) lgkmcnt(0)")
    a("s_barrier")
    a.label("L_FBMAX")
    a(f"buffer_load_dwordx4 {vr(KR,4)}, v{V_L16}, s[{SKV}:{SKV+3}], s{S_A} offen sc1")
    a(f"buffer_load_dwordx4 {vr(KR+4,4)}, v{V_L16}, s[{SKV}:{SKV+3}], s{S_A} offen offset:1024 sc1")
    a("s_waitcnt vmcnt(0)")
    for t in range(2):
        a(f"v_mfma_f32_32x32x16_bf16 {vr(S[t],16)}, {vr(KR,4)}, {vr(Q[t],4)}, 0")
        a(f"v_mfma_f32_32x32x16_bf16 {vr(S[t],16)}, {vr(KR+4,4)}, {vr(Q[t]+4,4)}, {vr(S[t],16)}")
    a("s_nop 15")
    for t in range(2):
        for r in range(0, 16, 2):
            a(f"v_max3_f32 v{4+t}, v{4+t}, v{S[t]+r}, v{S[t]+r+1}")
    a(f"s_add_u32 s{S_A}, s{S_A}, 4096")
    a(f"s_cmp_lt_u32 s{S_A}, 262144")
    a("s_cbranch_scc1 L_FBMAX")
    a(f"s_mov_b32 s{S_CUR}, {L_RING[0]}")
    a(f"s_mov_b32 s{S_NXT}, {L_RING[1]}")
    a(f"s_movk_i32 s{S_REM}, 0xff")
    a(f"s_movk_i32 s{S_RDY}, 0xff")
    a(f"s_mov_b32 s{S_C}, 1")
    kv_dma(S_CUR)
    a(f"s_mov_b32 s{S_C}, 2")
    kv_dma(S_NXT)
    a("v_mov_b32 v6, v4")
    a("v_mov_b32 v7, v5")
    a("s_nop 1")
    a("v_permlane32_swap_b32 v4, v6")
    a("v_permlane32_swap_b32 v5, v7")
    a("s_nop 0")
    a("v_max_f32 v4, v4, v6")
    a("v_max_f32 v5, v5, v7")
    split_m(4, Q[0] + 6)
    split_m(5, Q[1] + 6)
    a("s_waitcnt vmcnt(4)")
    a("s_barrier")
    a("s_branch L_PRIME")
    a.label("L_CODE_END")

    nsg = 102 if STAMP or "dbgt" in OPT else 78
    return a.text() + f"""
.section .rodata,"a"
.p2align 6
.amdhsa_kernel {KNAME}
  .amdhsa_next_free_vgpr 256
  .amdhsa_next_free_sgpr {nsg}
  .amdhsa_accum_offset 128
  .amdhsa_group_segment_fixed_size 0
  .amdhsa_kernarg_size 80
  .amdhsa_user_sgpr_count 2
  .amdhsa_user_sgpr_kernarg_segment_ptr 1
  .amdhsa_system_sgpr_workgroup_id_x 1
.end_amdhsa_kernel
"""

def main():
    global STAMP
    if len(sys.argv) > 2 and sys.argv[2] == "stamp": STAMP = True
    OPT.update(sys.argv[3:])
    OPT.update(["w1", "prio2"])
    hdr = open("cdna_kernels/" + NAME + ".s.ref").read().split("\n")
    top = [l for l in hdr if l.startswith(";") and "@launch" not in l and "Override" not in l and "grid=ceil" not in l]
    out = "\n".join(top[:11]) + "\n"
    out += f"; @launch grid=(256,1,1) block=(512,1,1) lds={LDS_BYTES}\n"
    out += """;
"""
    out += '.amdgcn_target "amdgcn-amd-amdhsa--gfx950"\n'
    out += gen()
    path = sys.argv[1] if len(sys.argv) > 1 else "cdna_kernels/" + NAME + ".s"
    open(path, "w").write(out)

if __name__ == "__main__":
    main()
```

```python
NSEG = 12
def kernel(name, body, iters, nvgpr=128):
    segs = ""
    for s in range(NSEG):
        segs += f"""
    s_mov_b32 s20, {iters}
L_{name}_{s}:
{body}
    s_sub_u32 s20, s20, 1
    s_cmp_lg_u32 s20, 0
    s_cbranch_scc1 L_{name}_{s}
    s_memtime s[{36+4*s}:{37+4*s}]
    s_memrealtime s[{38+4*s}:{39+4*s}]
"""
    st = ""
    for s in range(NSEG+1):
        st += f"""
    v_mov_b32 v2, s{32+4*s}
    v_mov_b32 v3, s{33+4*s}
    v_mov_b32 v4, s{34+4*s}
    v_mov_b32 v5, s{35+4*s}
    buffer_store_dwordx4 v[2:5], v1, s[8:11], 0 offen offset:{16*s}
    s_nop 1
"""
    init = ""
    for r in range(8, 128):
        init += f"""
    v_mul_u32_u24 v6, {(r*2654435761 >> 8) & 0xffffff | 1}, v7
    v_add_u32 v7, {r*40503+12345}, v6
    v_and_b32 v6, 0x807f807f, v7
    v_or_b32 v{r}, 0x3f003f00, v6
    v_and_b32 v7, 0xffffff, v7
"""
    return f"""
.text
.globl {name}
.p2align 8
.type {name},@function
{name}:
    s_load_dwordx2 s[4:5], s[0:1], 0
    v_lshrrev_b32 v1, 6, v0
    s_lshl_b32 s3, s2, 4
    v_add_u32 v1, s3, v1
    v_lshlrev_b32 v1, 8, v1           ; *256 bytes
    v_add_u32 v7, s3, v0
    v_mul_u32_u24 v7, 7919, v7
    v_and_b32 v7, 0xffffff, v7
{init}
    s_waitcnt lgkmcnt(0)
    s_mov_b32 s8, s4
    s_mov_b32 s9, s5
    s_mov_b32 s10, 0x100000
    s_mov_b32 s11, 0x00020000
    s_barrier
    s_memtime s[32:33]
    s_memrealtime s[34:35]
{segs}
    s_waitcnt lgkmcnt(0)
    v_and_b32 v6, 63, v0
    v_cmp_eq_u32 vcc, 0, v6
    s_and_saveexec_b64 s[22:23], vcc
{st}
    s_waitcnt vmcnt(0)
    s_endpgm
.section .rodata,"a"
.p2align 6
.amdhsa_kernel {name}
  .amdhsa_next_free_vgpr {nvgpr}
  .amdhsa_next_free_sgpr 100
  .amdhsa_accum_offset {nvgpr}
  .amdhsa_group_segment_fixed_size 0
  .amdhsa_kernarg_size 80
  .amdhsa_user_sgpr_count 2
  .amdhsa_user_sgpr_kernarg_segment_ptr 1
  .amdhsa_system_sgpr_workgroup_id_x 1
.end_amdhsa_kernel
"""
def mix(mf, nexp=4, ncvt=2, reps=2):
    b=[]
    for r in range(reps):
      for m in range(4):
        if mf: b.append("    " + mf(m))
        e=0
        for i in range(2*m, 2*m+2):
            if e < nexp: b.append(f"    v_exp_f32 v{40+2*i}, v{8+2*i}"); e+=1
            if e < nexp: b.append(f"    v_exp_f32 v{41+2*i}, v{9+2*i}"); e+=1
            if (i-2*m) < ncvt: b.append(f"    v_cvt_pk_bf16_f32 v{56+i}, v{24+2*i}, v{25+2*i}")
    return "\n".join(b)
v32 = lambda m: f"v_mfma_f32_32x32x16_bf16 v[{64+16*m}:{79+16*m}], v[{8+4*m}:{11+4*m}], v[{24+4*m}:{27+4*m}], 0"
def v16(m):
    return f"v_mfma_f32_16x16x32_bf16 v[{64+8*m}:{67+8*m}], v[{8+4*m}:{11+4*m}], v[{24+4*m}:{27+4*m}], 0\n    v_mfma_f32_16x16x32_bf16 v[{68+8*m}:{71+8*m}], v[{12+4*m}:{15+4*m}], v[{28+4*m}:{31+4*m}], 0"
ks = {}
ks["mix_kernel"] = (mix(v32), 6)
ks["mix16_kernel"] = (mix(v16), 6)
ks["exponly_kernel"] = (mix(None, 4, 0), 9)
ks["expcvt_kernel"] = (mix(None, 4, 2), 7)
ks["mfmaonly_kernel"] = (mix(v32, 0, 0), 9)
ks["mfma16only_kernel"] = (mix(v16, 0, 0), 9)
out = "".join(f"; @launch kernel={k} grid=(1,1,1) block=(512,1,1) lds=0\n" for k in ks)
out += '.amdgcn_target "amdgcn-amd-amdhsa--gfx950"\n'
for k, (body, it) in ks.items():
    out += kernel(k, body, it)
open("clk.s", "w").write(out)
```

```python
import gen_clk
from gen_clk import kernel
vr=lambda lo,n: f"v[{lo}:{lo+n-1}]"
ar=lambda lo,n: f"a[{lo}:{lo+n-1}]"
Q=[8,16]; S=[24,40]; O=[56,72]; P=88; KR,VR=96,104
def unit(T, variant):
    Sc,Sn=S[T],S[1-T]
    b=[]
    E=lambda i: b.append(f"    v_exp_f32 v{Sc+i}, v{Sc+i}")
    C=lambda i: b.append(f"    v_cvt_pk_bf16_f32 v{P+i}, v{Sc+2*i}, v{Sc+2*i+1}")
    Oa=(lambda t: ar(16*t,16)) if variant=="agpr" else (lambda t: vr(O[t],16))
    M1=f"    v_mfma_f32_32x32x16_bf16 {vr(Sn,16)}, {vr(KR,4)}, {vr(Q[1-T],4)}, 0"
    M2=f"    v_mfma_f32_32x32x16_bf16 {Oa(1-T)}, {vr(VR+4,4)}, {vr(P+4,4)}, {Oa(1-T)}"
    M3=f"    v_mfma_f32_32x32x16_bf16 {vr(Sn,16)}, {vr(KR+4,4)}, {vr(Q[1-T]+4,4)}, {vr(Sn,16)}"
    M4=f"    v_mfma_f32_32x32x16_bf16 {Oa(T)}, {vr(VR,4)}, {vr(P,4)}, {Oa(T)}"
    if variant=="nopv": M2=M4="    s_nop 0"
    if variant=="nos": M1=M3="    s_nop 0"
    if variant=="m16":
        s16=[f"    v_mfma_f32_16x16x32_bf16 {vr(Sn+4*i,4)}, {vr(KR+4*(i&1),4)}, {vr(Q[1-T]+4*(i>>1),4)}, 0" for i in range(4)]
        p16=[f"    v_mfma_f32_16x16x32_bf16 {vr(O[T]+4*i,4)}, {vr(VR+4*(i&1),4)}, {vr(P+4*(i>>1),4)}, {vr(O[T]+4*i,4)}" for i in range(4)]
        ms=[s16[0],p16[2],s16[1],p16[3],s16[2],s16[3],p16[0],p16[1]]
        for k in range(8):
            b.append(ms[k]); E(2*k); E(2*k+1)
            if k>0: C(k-1)
        b.append("    s_nop 0"); C(7)
        return b
    b.append(M1); E(0);E(1);E(2);E(3)
    b.append(M2 if variant!="adj" else M3); C(0);C(1);E(4);E(5);E(6)
    b.append(M3 if variant!="adj" else M2); E(7);C(2);C(3);E(8);E(9);E(10)
    b.append(M4); E(11);C(4);C(5);E(12);E(13);E(14);E(15);C(6);C(7)
    return b
ks={}
for v in ("base","agpr","adj","m16","nopv","nos"):
    body="\n".join(unit(0,v)+unit(1,v))
    ks[f"u{v}_kernel"]=(body,6)
out = "".join(f"; @launch kernel={k} grid=(1,1,1) block=(512,1,1) lds=0\n" for k in ks)
out += '.amdgcn_target "amdgcn-amd-amdhsa--gfx950"\n'
for k,(body,it) in ks.items():
    kk=kernel(k,body,it,nvgpr=128)
    kk=kk.replace("    s_waitcnt lgkmcnt(0)\n    s_mov_b32 s8, s4", "".join(f"    v_and_b32 v{r}, 0xbe7fbe7f, v{r}\n" for r in range(8,24))+"    s_waitcnt lgkmcnt(0)\n    s_mov_b32 s8, s4",1)
    kk=kk.replace(".amdhsa_next_free_vgpr 128",".amdhsa_next_free_vgpr 160")
    out+=kk
open("clk2.s","w").write(out)
```
